```python
import torch

def _softmax(x, axis=-1):
    return torch.softmax(x, dim=axis)
def _gelu(x):
    return torch.nn.functional.gelu(x, approximate="tanh")
def _silu(x):
    return torch.nn.functional.silu(x)
def _sigmoid(x):
    return torch.sigmoid(x)
def _layernorm(x, axis=-1, eps=1e-5):
    m = x.mean(dim=axis, keepdim=True)
    v = x.var(dim=axis, keepdim=True, unbiased=False)
    return (x - m) / torch.sqrt(v + eps)
def _scatter_add(tgt, idx, src, axis=0):
    return tgt.clone().index_add_(axis, idx, src)
def _segment_sum(src, seg, n):
    out = torch.zeros((n,) + src.shape[1:], dtype=src.dtype)
    return out.index_add_(0, seg, src)
def _pad(x, pw):
    flat = tuple(v for pair in reversed(pw) for v in pair)
    return torch.nn.functional.pad(x, flat)

kernel_name = 'gated_mix__grouped_kv_mqa__dense_activation_relu__prompt'

def setup_inputs():

    _w = (lambda a: (lambda t: t.to(torch.bfloat16) if t.is_floating_point() else t)(torch.as_tensor(a)))
    def _A_setup():
        B, S, D, H = 1, 2048, 640, 32
        Dh = D // H
        return {
            "x": _w((lambda *s: torch.randn(*s, dtype=torch.bfloat16) * 0.05)(B, S, D)),
            "wq": _w((lambda *s: torch.randn(*s, dtype=torch.bfloat16) * 0.8)(D, H * Dh)),
            "wk": _w((lambda *s: torch.randn(*s, dtype=torch.bfloat16) * 0.8)(D, Dh)),
            "wv": _w((lambda *s: torch.randn(*s, dtype=torch.bfloat16) * 0.2)(D, Dh)),
            "wo": _w((lambda *s: torch.randn(*s, dtype=torch.bfloat16) * 0.2)(H * Dh, D)),
        }
    _A_in = _A_setup()

    def _B_setup():
        B, S, D, Dff = 1, 2048, 640, 1536
        return {
            "x": _w((lambda *s: torch.randn(*s, dtype=torch.bfloat16) * 0.05)(B, S, D)),
            "w1": _w((lambda *s: torch.randn(*s, dtype=torch.bfloat16) * 0.05)(D, Dff)),
            "w2": _w((lambda *s: torch.randn(*s, dtype=torch.bfloat16) * 0.05)(Dff, D)),
        }
    _B_in = _B_setup()

    return {
        "A_x": _A_in["x"],
        "A_wq": _A_in["wq"],
        "A_wk": _A_in["wk"],
        "A_wv": _A_in["wv"],
        "A_wo": _A_in["wo"],
        "B_x": _B_in["x"],
        "B_w1": _B_in["w1"],
        "B_w2": _B_in["w2"],
        "gate_w": _w((lambda *s: torch.randn(*s, dtype=torch.bfloat16) * 0.05)(640) * 16.0),
    }

def reference(A_x, A_wq, A_wk, A_wv, A_wo, B_x, B_w1, B_w2, gate_w):
    def _A_ref(x, wq, wk, wv, wo):
        B, S, D = x.shape
        H = 32
        Dh = D // H
        q = (lambda x, *d: x.permute(*d))((x @ wq).reshape(B, S, H, Dh), 0, 2, 1, 3)
        k = x @ wk
        v = x @ wv
        scores = torch.einsum("bhqd,bkd->bhqk", q, k) * (Dh ** -0.5)
        p = _softmax(scores, axis=-1)
        o = torch.einsum("bhqk,bkd->bhqd", p, v)
        return (lambda x, *d: x.permute(*d))(o, 0, 2, 1, 3).reshape(B, S, H * Dh) @ wo

    def _B_ref(x, w1, w2):
        h = torch.einsum("bsd,df->bsf", x, w1)
        zero = torch.zeros_like(h)
        h = torch.maximum(h, zero)
        return torch.einsum("bsf,fd->bsd", h, w2)

    x = A_x
    g = _sigmoid((x * gate_w).sum(-1, keepdims=True))
    a = _A_ref(x, A_wq, A_wk, A_wv, A_wo)
    b = _B_ref(x, B_w1, B_w2)
    return g * a + (1 - g) * b
```

```python
import re

REG_RE = re.compile(r"\b([vas])\[(\d+):(\d+)\]|\b([vas])(\d+)\b|\b(vcc|exec|m0|scc)\b")


def regs_of(tok):
    out = set()
    for m in REG_RE.finditer(tok):
        if m.group(1):
            for i in range(int(m.group(2)), int(m.group(3)) + 1):
                out.add(m.group(1) + str(i))
        elif m.group(4):
            out.add(m.group(4) + m.group(5))
        else:
            out.add(m.group(6))
    return out


TRANS = ("v_exp_f32", "v_log_f32", "v_rcp_f32", "v_rsq_f32", "v_sqrt_f32", "v_sin_f32", "v_cos_f32")


def mfma_passes(mn):
    if "32x32" in mn:
        return 8
    if "16x16" in mn:
        return 4
    raise ValueError(mn)


class Ins:
    __slots__ = ("text", "mn", "rd", "wr", "kind", "srcc", "srcab", "states", "store_data")

    def __init__(self, text):
        self.text = text
        t = text.split(";")[0].strip()
        parts = t.split(None, 1)
        self.mn = mn = parts[0]
        ops = [o.strip() for o in parts[1].split(",")] if len(parts) > 1 else []
        self.rd, self.wr = set(), set()
        self.srcc, self.srcab, self.store_data = set(), set(), set()
        self.states = 1
        R = regs_of
        if mn.startswith("v_mfma") or mn.startswith("v_smfmac"):
            self.kind = "mfma"
            self.wr = R(ops[0])
            self.srcab = R(ops[1]) | R(ops[2])
            if mn.startswith("v_smfmac"):
                self.srcc = R(ops[0])
                self.srcab |= R(ops[3].split()[0])
            else:
                self.srcc = R(ops[3].split()[0])
            self.rd = self.srcab | self.srcc
        elif mn.startswith("ds_read"):
            self.kind = "ds"
            self.wr = R(ops[0])
            self.rd = R(ops[1].split()[0])
        elif mn.startswith("ds_write"):
            self.kind = "ds"
            for o in ops:
                self.rd |= R(o.split()[0])
        elif mn.startswith("buffer_load") or mn.startswith("global_load"):
            self.kind = "vm"
            if re.search(r"\blds\b", t):
                for o in ops:
                    self.rd |= R(o.split()[0])
                self.rd.add("m0")
            else:
                self.wr = R(ops[0])
                for o in ops[1:]:
                    self.rd |= R(o.split()[0])
        elif mn.startswith("buffer_store") or mn.startswith("buffer_atomic"):
            self.kind = "vm"
            for o in ops:
                self.rd |= R(o.split()[0])
            if re.search(r"x[34]\b", mn):
                self.store_data = R(ops[0])
        elif mn.startswith("s_load") or mn in ("s_memtime", "s_memrealtime"):
            self.kind = "smem"
            self.wr = R(ops[0])
            for o in ops[1:]:
                self.rd |= R(o)
        elif mn == "s_nop":
            self.kind = "nop"
            self.states = int(ops[0], 0) + 1
        elif mn in ("s_waitcnt", "s_barrier", "s_endpgm", "s_setprio", "s_sleep") or mn.startswith("s_cbranch") or mn == "s_branch":
            self.kind = "ctl"
        elif mn.startswith("s_cmp") or mn.startswith("s_bitcmp"):
            self.kind = "salu"
            for o in ops:
                self.rd |= R(o)
            self.wr = {"scc"}
        elif mn.startswith("s_"):
            self.kind = "salu"
            self.wr = R(ops[0])
            for o in ops[1:]:
                self.rd |= R(o)
            if "saveexec" in mn:
                self.wr.add("exec")
        elif mn.startswith("v_"):
            self.kind = "valu"
            self.wr = R(ops[0])
            for o in ops[1:]:
                self.rd |= R(o.split()[0] if o and not o.startswith("-") else o)
            if mn.startswith("v_permlane"):
                self.rd |= R(ops[0])
                self.wr |= R(ops[1])
            if mn.startswith("v_fmac") or mn.startswith("v_dot2c"):
                self.rd |= R(ops[0])
            if mn.startswith("v_add_co") or mn.startswith("v_addc_co"):
                self.wr |= R(ops[1])
        else:
            raise ValueError("unknown instruction: " + text)

    @property
    def is_trans(self):
        return self.mn.replace("_e32", "").replace("_e64", "") in TRANS


class Asm:
    def __init__(self):
        self.out = []
        self.hist = []
        self.vm = []
        self.lg = []
        self.smem = set()
        self.nops_inserted = 0
        self.log = []

    def raw(self, text):
        self.out.append(text)

    def comment(self, text):
        self.out.append("    ; " + text)

    def _emit_wait(self, vm=None, lg=None):
        parts = []
        if vm is not None:
            parts.append(f"vmcnt({min(vm, 63)})")
        if lg is not None:
            parts.append(f"lgkmcnt({min(lg, 15)})")
        if parts:
            self._push(Ins("s_waitcnt " + " ".join(parts)))

    def _need(self, q, pred):
        idx = -1
        for i, e in enumerate(q):
            if pred(e):
                idx = i
        return idx

    def _waits_for(self, vm_idx, lg_idx, smem=False):
        vm = lg = None
        if vm_idx >= 0:
            vm = len(self.vm) - 1 - vm_idx
            if vm > 63:
                vm = 63
            self.vm = self.vm[len(self.vm) - vm:] if vm else []
        if smem:
            lg = 0
            self.lg = []
            self.smem = set()
        elif lg_idx >= 0:
            lg = len(self.lg) - 1 - lg_idx
            if self.smem:
                lg = 0
                self.smem = set()
            if lg > 15:
                lg = 15
            self.lg = self.lg[len(self.lg) - lg:] if lg else []
        self._emit_wait(vm, lg)

    def wait_vm(self, tag):
        self._waits_for(self._need(self.vm, lambda e: e[1] == tag), -1)

    def wait_lds(self, tag=None):
        if tag is None:
            self._waits_for(-1, len(self.lg) - 1)
        else:
            self._waits_for(-1, self._need(self.lg, lambda e: e[1] == tag))

    def wait(self, vm_tag=None, lds_all=False, lds_tag=None):
        vi = self._need(self.vm, lambda e: e[1] == vm_tag) if vm_tag is not None else -1
        li = -1
        if lds_all:
            li = len(self.lg) - 1
        elif lds_tag is not None:
            li = self._need(self.lg, lambda e: e[1] == lds_tag)
        self._waits_for(vi, li)

    def wait_regs(self, regs):
        regs = regs_of(regs) if isinstance(regs, str) else regs
        self._waits_for(self._need(self.vm, lambda e: e[0] & regs), self._need(self.lg, lambda e: e[0] & regs),
                        bool(self.smem & regs))

    def wait_all(self):
        self._push(Ins("s_waitcnt vmcnt(0) lgkmcnt(0)"))
        self.vm, self.lg, self.smem = [], [], set()

    def assume_drained(self):
        self.vm, self.lg, self.smem = [], [], set()

    def _required(self, p, c):
        need = 0
        vr = lambda s: {r for r in s if r[0] in "va" and r not in ("vcc",)}
        sr = lambda s: {r for r in s if r[0] == "s" and r != "scc" or r == "vcc"}
        if p.kind == "valu":
            pw = vr(p.wr)
            if c.kind == "mfma" and pw & c.rd:
                need = max(need, 2)
            if c.kind == "valu":
                if p.is_trans and not c.is_trans and pw & c.rd:
                    need = max(need, 1)
                if c.mn.startswith("v_permlane") and pw & c.rd:
                    need = max(need, 2)
                if c.mn.startswith(("v_readfirstlane", "v_readlane")) and pw & c.rd:
                    need = max(need, 1)
                if "dpp" in c.text and pw & c.rd:
                    need = max(need, 2)
                if sr(p.wr) & c.rd:
                    need = max(need, 2)
                if c.mn.startswith("v_cndmask") and "vcc" in p.wr and "vcc" in c.text:
                    need = max(need, 2)
            if c.kind == "vm" and sr(p.wr) & c.rd:
                need = max(need, 5)
            if c.kind == "mfma" and "exec" in p.wr:
                need = max(need, 4)
            if c.kind == "salu" and sr(p.wr) & c.rd:
                need = max(need, 1)
            if c.kind == "ctl" and "vcc" in c.mn and "vcc" in p.wr:
                need = max(need, 1)
        if p.kind == "salu" and "m0" in p.wr and c.kind == "vm" and "m0" in c.rd:
            need = max(need, 1)
        if p.kind == "vm" and p.store_data and (p.store_data & c.wr) and c.kind != "vm" and c.kind != "ds":
            need = max(need, 2)
        if p.kind == "vm" and p.store_data and (p.store_data & c.wr) and c.kind in ("vm", "ds"):
            need = max(need, 1)
        if p.kind == "mfma":
            n = mfma_passes(p.mn)
            big = {4: 8, 8: 12}[n]
            if c.kind == "mfma":
                if p.wr & c.srcab:
                    need = max(need, big)
                if p.wr & c.srcc:
                    same = (c.srcc == p.wr and mfma_passes(c.mn) == n)
                    need = max(need, 0 if same else {4: 6, 8: 10}[n])
                elif p.wr & c.wr and not (c.wr == p.wr and mfma_passes(c.mn) == n):
                    need = max(need, {4: 6, 8: 10}[n])
            elif c.kind in ("valu", "vm", "ds"):
                if p.wr & (c.rd | c.wr):
                    need = max(need, big)
                if c.kind == "valu" and p.srcc & c.wr:
                    need = max(need, {4: 3, 8: 7}[n])
        return need

    def _push(self, ins):
        dist, pad = 0, 0
        for p in reversed(self.hist):
            req = self._required(p, ins)
            if req > dist + pad:
                pad = req - dist
            dist += p.states
            if dist >= 20:
                break
        while pad > 0:
            k = min(pad, 16)
            n = Ins(f"s_nop {k - 1}")
            self.out.append("    " + n.text)
            self.hist.append(n)
            self.nops_inserted += k
            self.log.append(f"nop {k} before: {ins.text}")
            pad -= k
        self.out.append("    " + ins.text)
        self.hist.append(ins)
        if len(self.hist) > 40:
            self.hist = self.hist[-30:]

    def __call__(self, text, tag=None):
        for line in text.split("\n"):
            line = line.strip()
            if not line:
                continue
            if line.startswith(";"):
                self.out.append("    " + line)
                continue
            if line.endswith(":") or line.startswith("."):
                self.out.append(line)
                continue
            ins = Ins(line)
            touched = ins.rd | ins.wr
            vi = self._need(self.vm, lambda e: e[0] & touched)
            li = self._need(self.lg, lambda e: e[0] & touched)
            sm = bool(self.smem & touched)
            if vi >= 0 or li >= 0 or sm:
                self._waits_for(vi, li, sm)
            self._push(ins)
            if ins.kind == "vm":
                self.vm.append((set(ins.wr), tag))
            elif ins.kind == "ds":
                self.lg.append((set(ins.wr), tag))
            elif ins.kind == "smem":
                self.smem |= ins.wr

    def text(self):
        return "\n".join(self.out) + "\n"


def vr(base, n=1, c="v"):
    return f"{c}{base}" if n == 1 else f"{c}[{base}:{base + n - 1}]"


def ar(base, n=1):
    return vr(base, n, "a")


def sr(base, n=1):
    return vr(base, n, "s")
```

```python
import sys, math, struct, os
sys.path.insert(0, os.path.dirname(os.path.abspath(__file__)))
from asmlib import Asm, vr, ar, sr

NAME = "gated_mix__grouped_kv_mqa__dense_activation_relu__prompt"
OOB = 0x80000000


def f2u(x):
    return struct.unpack("<I", struct.pack("<f", x))[0]


WS_KV = 0
KVREC = 2816
WS_F2 = 0x30000
WS_F3 = 0x32000
WS_DIAG = 0x38000
WS_H = 0x100000
WS_O = 0x800000
WS_SIZE = 0x1000000

LX = 0
LR = 81920
L_KVIMG = LR + 61440
L_Q = [LR, LR + 20480, LR + 40960, L_KVIMG, LR]
L_W1 = LR + 20480
L_QIMG = LR
L_G = LR + 10240
L_RING = 30720
NSLOT = 6
L_SCR = 122880
L_LSC = 147456

S_X, S_WQ, S_WKV, S_WO, S_W1, S_W2, S_GATE, S_OUT, S_DBG, S_WS = 4, 8, 12, 16, 20, 24, 28, 32, 36, 40
S_WV = 44
sW, sR, sJ, sROT = 46, 47, 48, 49
sDC = 50
sT0, sT1, sT2, sT3 = 56, 57, 58, 59
sXB, sQB, sW1B = 60, 61, 62
sLW = 63
sMASK = 64
sMASK2 = 66
sKV = 68
sKVLO, sKVHI = 69, 70
sHB = 71
sW2B, sWOB = 72, 73
sRING = 74
sOB = 75
sF2, sF3 = 76, 77
sSPIN = 78
sUP = 80
sFB = 82
sST = 84

vL16, vIDX, vVA, vK2A = 1, 2, 3, 4
vSA, vSB = 5, 10
vRA, vRA2, vRB = 15, 16, 17
vGO, vZ, vOM0, vKVST, vOM1 = 18, 19, 20, 21, 22
vLANE = 23
vOUT = 24
vOST = 25
vPOLL = 28
vT = 29
vXK = 32
vXH = 36
vR1 = 40
vW1D = 46
vXD, vRK, vKW = 49, 50, 51
vKG = 52
vQW = 58
vQR = 59
vHA = 60
vSTG = 64
vQACC = 64
vKVACC = 88
vWQF = 96
vHACC = 136
vXF = 184
vW1F = 200
vQ = 64
vKV = 88
vS = 136
vCACC = 88
vCW = 168
vTMP = 184
vP0 = 0
vJUNK = 255
vP0T = 246
aXF, aKW = 0, 80
aH, aO = 0, 192

QSCALE = math.log2(math.e) / math.sqrt(20.0)


class Cfg:
    diag = False
    rot = True
    mapping = "2d"
    kvrot = True
    stop = None
    f3_wait_step = 4
    f3_poll_step = 7
    f3_check_step = 10
    warm_code = True


def srd(a, s, size):
    a(f"s_mov_b32 s{s+2}, {size}")
    a(f"s_mov_b32 s{s+3}, 0x20000")


def gen(cfg):
    a = Asm()
    nstamp = [0]

    def stamp():
        if cfg.diag:
            a(f"s_memtime {sr(sST + 2 * nstamp[0], 2)}")
            nstamp[0] += 1
            assert nstamp[0] <= 9

    def dma(vaddr, srdreg, soff, ldsaddr, tag):
        s, c = ldsaddr
        if s is None:
            a(f"s_mov_b32 m0, {c}")
        else:
            a(f"s_add_u32 m0, s{s}, {c}")
        a(f"buffer_load_dwordx4 v{vaddr}, {sr(srdreg, 4)}, {soff} offen lds", tag=tag)

    a.raw(f"{NAME}_kernel:")
    a("s_cmp_ge_u32 s2, 256")
    a("s_cbranch_scc1 L_end")
    stamp()
    for s, off in ((S_X, 0), (S_WKV, 16), (S_WV, 24), (S_GATE, 64), (S_WQ, 8), (S_WS, 88), (S_W1, 48), (S_DBG, 80),
                   (S_W2, 56), (S_WO, 32), (S_OUT, 72)):
        a(f"s_load_dwordx2 {sr(s, 2)}, s[0:1], {off}")
    a(f"v_lshrrev_b32 v{vT}, 6, v0")
    a(f"v_and_b32 v{vLANE}, 63, v0")
    a(f"v_readfirstlane_b32 s{sW}, v{vT}")
    a(f"s_and_b32 s{sT0}, s2, 7")
    a(f"s_lshr_b32 s{sT1}, s2, 3")
    if cfg.mapping == "2d":
        a(f"""s_lshr_b32 s{sR}, s{sT0}, 1
        s_lshl_b32 s{sR}, s{sR}, 3
        s_lshr_b32 s{sT2}, s{sT1}, 2
        s_add_u32 s{sR}, s{sR}, s{sT2}
        s_and_b32 s{sJ}, s{sT0}, 1
        s_lshl_b32 s{sJ}, s{sJ}, 2
        s_and_b32 s{sT3}, s{sT1}, 3
        s_add_u32 s{sJ}, s{sJ}, s{sT3}
        s_add_u32 s{sROT}, s{sT2}, s{sT3}""")
    else:
        a(f"""s_lshr_b32 s{sT2}, s{sT1}, 3
        s_lshl_b32 s{sR}, s{sT0}, 2
        s_add_u32 s{sR}, s{sR}, s{sT2}
        s_and_b32 s{sJ}, s{sT1}, 7
        s_add_u32 s{sROT}, s{sT2}, s{sJ}""")
    if not cfg.rot:
        a(f"s_mov_b32 s{sROT}, 0")
    for _ in range(2):
        a(f"s_cmp_ge_u32 s{sROT}, 5\n s_cselect_b32 s{sT2}, 5, 0\n s_sub_u32 s{sROT}, s{sROT}, s{sT2}")
    a(f"s_mov_b32 s{sDC}, s{sROT}")
    for p in range(1, 5):
        a(f"s_add_u32 s{sDC+p}, s{sDC+p-1}, 1\n s_cmp_ge_u32 s{sDC+p}, 5\n s_cselect_b32 s{sDC+p}, 0, s{sDC+p}")
    for s, size in ((S_X, 2048 * 1280), (S_WQ, 640 * 1280), (S_WO, 640 * 1280), (S_W1, 640 * 3072), (S_W2, 1536 * 1280),
                    (S_GATE, 1280), (S_OUT, 2048 * 1280), (S_DBG, 256), (S_WS, WS_SIZE)):
        srd(a, s, size)
    L = vLANE
    T0, T1, T2 = vT, vT + 1, vT + 2
    a(f"v_lshlrev_b32 v{vL16}, 4, v{L}")
    a(f"s_lshl_b32 s{sT2}, s{sROT}, 7")
    a(f"s_and_b32 s{sT3}, s{sJ}, 1\n s_lshl_b32 s{sT3}, s{sT3}, 4")
    for n in range(3):
        a(f"""v_add_u32 v{T0}, s{sT2}, v0
        v_add_u32 v{T0}, {256*n}, v{T0}
        v_subrev_u32 v{T1}, 640, v{T0}
        v_min_u32 v{T0}, v{T0}, v{T1}
        v_mul_u32_u24 v{vKG+n}, 40, v{T0}
        v_add_u32 v{vKG+n}, s{sT3}, v{vKG+n}
        v_lshlrev_b32 v{vKG+3+n}, 1, v{T0}""")
    a(f"""v_lshrrev_b32 v{T0}, 3, v{L}
    v_and_b32 v{T1}, 7, v{L}
    v_xor_b32 v{T1}, v{T1}, v{T0}
    v_mul_u32_u24 v{T0}, 1280, v{T0}
    v_lshl_add_u32 v{vXD}, v{T1}, 4, v{T0}""")
    a(f"s_lshl_b32 s{sXB}, s{sR}, 2\n s_add_u32 s{sXB}, s{sXB}, s{sW}\n s_mul_i32 s{sXB}, s{sXB}, {16*1280}")
    a(f"s_lshl_b32 s{sLW}, s{sW}, 11")
    a(f"s_bitcmp1_b32 s{sJ}, 1")
    a(f"s_cselect_b32 s{S_WKV}, s{S_WV}, s{S_WKV}\n s_cselect_b32 s{S_WKV+1}, s{S_WV+1}, s{S_WKV+1}")
    a(f"s_cmp_lt_u32 s{sJ}, 4\n s_cselect_b32 s{S_WKV+2}, 25600, 0\n s_mov_b32 s{S_WKV+3}, 0x20000")
    for n in range(3):
        b = vSTG + 8 * n
        a(f"buffer_load_dwordx4 {vr(b, 4)}, v{vKG+n}, {sr(S_WKV, 4)}, 0 offen")
        a(f"buffer_load_dwordx2 {vr(b+4, 2)}, v{vKG+n}, {sr(S_WKV, 4)}, 0 offen offset:16")
        a(f"buffer_load_ushort v{b+6}, v{vKG+3+n}, {sr(S_GATE, 4)}, 0 offen")
    for p in range(5):
        a(f"s_lshl_b32 s{sT2}, s{sDC+p}, 8\n s_add_u32 s{sT2}, s{sT2}, s{sXB}")
        a(f"s_add_u32 s{sT3}, s{sT2}, {8*1280}")
        for cc in range(2):
            for b in range(2):
                so = sT2 if b == 0 else sT3
                base = LX + (2 * p + cc) * 8192 + b * 1024 - 128 * cc
                a(f"s_add_u32 m0, s{sLW}, {base}" if base else f"s_mov_b32 m0, s{sLW}")
                a(f"buffer_load_dwordx4 v{vXD}, {sr(S_X, 4)}, s{so} offen" + (" offset:128" if cc else "") + " lds", tag="x")
    for q in range(5):
        a(f"""v_add_u32 v{T0}, {64*q}, v{L}
        v_mul_u32_u24 v{T1}, 6554, v{T0}
        v_lshrrev_b32 v{T1}, 16, v{T1}
        v_mul_u32_u24 v{T2}, 10, v{T1}
        v_sub_u32 v{T2}, v{T0}, v{T2}
        v_lshlrev_b32 v{T2}, 4, v{T2}
        v_mul_u32_u24 v{vSB+q}, 1280, v{T1}
        v_add_u32 v{vSB+q}, v{vSB+q}, v{T2}
        v_and_b32 v{T0}, 0x13, v{T1}
        v_and_b32 v{vSA+q}, 4, v{T1}
        v_lshl_or_b32 v{T0}, v{vSA+q}, 1, v{T0}
        v_and_b32 v{vSA+q}, 8, v{T1}
        v_lshrrev_b32 v{vSA+q}, 1, v{vSA+q}
        v_or_b32 v{T0}, v{T0}, v{vSA+q}
        v_mul_u32_u24 v{T0}, 1280, v{T0}
        v_add_u32 v{vSA+q}, v{T0}, v{T2}""")
    a(f"s_mul_i32 s{sQB}, s{sJ}, 160\n s_mul_i32 s{sT2}, s{sW}, {32*1280}\n s_add_u32 s{sQB}, s{sQB}, s{sT2}")
    a(f"s_mul_i32 s{sLW}, s{sW}, 5120")

    def issue_q(p):
        a(f"s_mul_i32 s{sT2}, s{sDC+p}, {128*1280}\n s_add_u32 s{sT2}, s{sT2}, s{sQB}")
        for q in range(5):
            dma(vSA + q, S_WQ, f"s{sT2}", (sLW, L_Q[p] + 1024 * q), f"q{p}")

    for p in range(3):
        issue_q(p)
    a(f"""s_lshl_b32 s{sT2}, s{sJ}, 2
    s_add_u32 s{sT2}, s{sT2}, s{sW}
    s_lshl_b32 s{sT2}, s{sT2}, 2
    s_lshl_b32 s{sT3}, s{sR}, 7
    s_add_u32 s{sF2}, s{sT3}, {WS_F2}
    s_add_u32 s{sF3}, s{sT3}, {WS_F3}
    s_add_u32 s{sT3}, s{sT2}, s{sF2}
    v_mov_b32 v{T0}, 0
    v_mov_b32 v{T1}, {OOB}
    v_cmp_eq_u32 vcc, 0, v{L}
    v_cndmask_b32 v{vPOLL}, v{T1}, v{T0}, vcc""")
    a(f"buffer_store_dword v{T0}, v{vPOLL}, {sr(S_WS, 4)}, s{sT3} offen sc1")
    a(f"s_lshl_b32 s{sT2}, s{sJ}, 2\n s_add_u32 s{sT3}, s{sT2}, s{sF3}")
    a(f"v_cmp_eq_u32 vcc, 0, v0\n v_cndmask_b32 v{vP0T}, v{T1}, v{T0}, vcc")
    a(f"buffer_store_dword v{T0}, v{vP0T}, {sr(S_WS, 4)}, s{sT3} offen sc1")
    if cfg.warm_code:
        a(f"s_getpc_b64 {sr(sMASK2, 2)}")
        a.raw("L_pc:")
        a(f"""s_lshr_b32 s{sT2}, s2, 3
        s_lshl_b32 s{sT2}, s{sT2}, 11
        v_lshlrev_b32 v{T1}, 7, v{L}
        v_add_u32 v{T1}, s{sT2}, v{T1}
        v_cmp_gt_u32 vcc, L_end-L_pc, v{T1}
        s_and_b64 vcc, vcc, 0xffff
        s_cmp_eq_u32 s{sW}, 0
        s_cselect_b64 vcc, vcc, 0
        s_and_saveexec_b64 {sr(sMASK, 2)}, vcc
        s_cbranch_execz L_nowarm""")
        a.raw(f"    global_load_dword v{vJUNK}, v{T1}, {sr(sMASK2, 2)}")
        a.raw("L_nowarm:")
        a(f"s_mov_b64 exec, -1")
    G, RR, CC, RHO = 250, 251, 252, 253
    SIG = 254
    a(f"""v_lshrrev_b32 v{G}, 4, v{L}
    v_bfe_u32 v{RR}, v{L}, 2, 2
    v_and_b32 v{CC}, 3, v{L}
    v_and_b32 v{RHO}, 15, v{L}
    v_mov_b32 v{vIDX}, 0xdddd
    s_mov_b32 s{sUP}, 0
    s_mov_b32 s{sUP+1}, -1
    s_mov_b32 s{sFB}, 0""")
    a(f"""v_lshrrev_b32 v{T0}, 1, v{G}
    v_lshlrev_b32 v{T0}, 4, v{T0}
    v_and_b32 v{T1}, 1, v{G}
    v_lshl_add_u32 v{T0}, v{T1}, 2, v{T0}
    v_add_u32 v{SIG}, v{T0}, v{RR}
    v_lshlrev_b32 v{T2}, 3, v{CC}
    v_mul_u32_u24 v{T0}, 160, v{SIG}
    v_add_u32 v{T0}, v{T0}, v{T2}
    v_add_u32 v{vRA}, {LR}, v{T0}
    v_add_u32 v{vRA2}, {LR + 40960}, v{T0}
    v_lshl_add_u32 v{vRK}, v{SIG}, 5, v{T2}
    v_add_u32 v{vRK}, {L_KVIMG}, v{vRK}""")
    a(f"""v_and_b32 v{T0}, 0x13, v0
    v_and_b32 v{T1}, 4, v0
    v_lshl_or_b32 v{T0}, v{T1}, 1, v{T0}
    v_and_b32 v{T1}, 8, v0
    v_lshrrev_b32 v{T1}, 1, v{T1}
    v_or_b32 v{T0}, v{T0}, v{T1}
    v_lshrrev_b32 v{T1}, 5, v0
    v_lshlrev_b32 v{T1}, 10, v{T1}
    v_lshl_add_u32 v{vKW}, v{T0}, 5, v{T1}
    v_add_u32 v{vKW}, {L_KVIMG}, v{vKW}
    v_mov_b32 v{vP0}, v{vP0T}""")
    a(f"""v_and_b32 v{T0}, 7, v{RHO}
    v_xor_b32 v{T0}, v{T0}, v{G}
    v_lshlrev_b32 v{T0}, 4, v{T0}
    v_lshl_add_u32 v{T0}, v{RHO}, 7, v{T0}
    v_xor_b32 v{T1}, 64, v{T0}
    s_lshl_b32 s{sT2}, s{sW}, 11
    s_and_b32 s{sT3}, s{sW}, 1
    s_lshl_b32 s{sT3}, s{sT3}, 12
    v_add_u32 v{vXK}, s{sT2}, v{T0}
    v_add_u32 v{vXK+2}, s{sT2}, v{T1}
    v_add_u32 v{vXH}, s{sT3}, v{T0}
    v_add_u32 v{vXH+2}, s{sT3}, v{T1}
    v_add_u32 v{vXK+1}, 40960, v{vXK}
    v_add_u32 v{vXK+3}, 40960, v{vXK+2}
    v_add_u32 v{vXH+1}, 40960, v{vXH}
    v_add_u32 v{vXH+3}, 40960, v{vXH+2}""")

    def xread(dst, base, ks, mt_off):
        c, s = ks >> 1, ks & 1
        hi = 1 if c >= 5 else 0
        return f"ds_read_b128 {dst}, v{base + 2*s + hi} offset:{(c - 5*hi) * 8192 + mt_off}"

    for n in range(3):
        b = vSTG + 8 * n
        if n == 2:
            a(f"s_cmp_lt_u32 s{sW}, 2\n s_cselect_b64 exec, -1, 0")
        a(f"ds_write_b128 v{vKW}, {vr(b, 4)} offset:{8192*n}")
        a(f"ds_write_b128 v{vKW}, {vr(b+4, 4)} offset:{8192*n + 16}")
    a("s_mov_b64 exec, -1")
    for q in range(3):
        a(f"""v_add_u32 v{T0}, {64*q}, v{L}
        v_mul_u32_u24 v{T1}, 2731, v{T0}
        v_lshrrev_b32 v{T1}, 16, v{T1}
        v_mul_u32_u24 v{T2}, 24, v{T1}
        v_sub_u32 v{T2}, v{T0}, v{T2}
        v_and_b32 v{T0}, 6, v{T1}
        v_xor_b32 v{T2}, v{T2}, v{T0}
        v_lshlrev_b32 v{T2}, 4, v{T2}
        v_and_b32 v{T0}, 4, v{T1}
        v_and_b32 v{T1}, 3, v{T1}
        v_lshl_add_u32 v{T1}, v{T0}, 1, v{T1}
        v_mul_u32_u24 v{T1}, 3072, v{T1}
        v_add_u32 v{vW1D+q}, v{T1}, v{T2}""")
    a(f"""s_lshr_b32 s{sT2}, s{sW}, 1
    s_lshl_b32 s{sT2}, s{sT2}, 4
    s_and_b32 s{sT3}, s{sW}, 1
    s_lshl_b32 s{sT3}, s{sT3}, 2
    s_add_u32 s{sT2}, s{sT2}, s{sT3}
    s_mul_i32 s{sT2}, s{sT2}, 3072
    s_mul_i32 s{sW1B}, s{sJ}, 384
    s_add_u32 s{sW1B}, s{sW1B}, s{sT2}""")
    a(f"""v_mul_u32_u24 v{T0}, 384, v{SIG}
    v_lshl_add_u32 v{T0}, v{CC}, 3, v{T0}
    v_add_u32 v{T0}, {L_W1}, v{T0}
    v_bfe_u32 v{T1}, v{SIG}, 1, 2
    s_lshr_b32 s{sT2}, s{sW}, 1
    s_mul_i32 s{sT2}, s{sT2}, 6""")
    for i in range(6):
        a(f"""s_add_u32 s{sT3}, s{sT2}, {i}
        s_and_b32 s{sT0}, s{sT3}, 3
        s_lshr_b32 s{sT3}, s{sT3}, 2
        s_lshl_b32 s{sT3}, s{sT3}, 7
        v_xor_b32 v{T2}, s{sT0}, v{T1}
        v_lshl_add_u32 v{T2}, v{T2}, 5, v{T0}
        v_add_u32 v{vR1+i}, s{sT3}, v{T2}""")
    a(f"""s_and_b32 s{sT0}, s{sW}, 1
    s_and_b32 s{sT1}, s{sJ}, 1
    s_cmp_ge_u32 s{sJ}, 2
    s_cbranch_scc1 L_vrole""")
    a(f"""s_lshl_b32 s{sT2}, s{sT1}, 1
    v_add_u32 v{T0}, s{sT2}, v{G}
    s_lshl_b32 s{sT3}, s{sT0}, 4
    v_add_u32 v{T1}, s{sT3}, v{RHO}
    v_lshrrev_b32 v{T2}, 1, v{T0}
    v_lshlrev_b32 v{T2}, 9, v{T2}
    v_lshl_add_u32 v{T2}, v{T1}, 4, v{T2}
    v_and_b32 v{vKVST}, 1, v{T0}
    v_lshl_add_u32 v{T2}, v{vKVST}, 3, v{T2}
    v_lshlrev_b32 v{T1}, 3, v{T1}
    v_add_u32 v{T1}, 2560, v{T1}
    v_cmp_eq_u32 vcc, 4, v{T0}
    v_cndmask_b32 v{vKVST}, v{T2}, v{T1}, vcc
    v_mov_b32 v{T2}, {OOB}
    v_cmp_eq_u32 vcc, 3, v{G}
    v_cndmask_b32 v{vKVST}, v{vKVST}, v{T2}, vcc
    v_cmp_gt_u32 vcc, s{sT1}, v{G}
    v_cndmask_b32 v{vKVST}, v{vKVST}, v{T2}, vcc
    s_mov_b64 {sr(sMASK, 2)}, 0
    s_mov_b64 {sr(sMASK2, 2)}, 0
    s_branch L_roledone""")
    a.raw("L_vrole:")
    a(f"""s_lshl_b32 s{sT2}, s{sT1}, 3
    v_add_u32 v{T0}, s{sT2}, v{RHO}
    v_lshrrev_b32 v{T1}, 2, v{T0}
    v_lshlrev_b32 v{T1}, 3, v{T1}
    v_and_b32 v{T2}, 3, v{T0}
    v_add_u32 v{T1}, v{T1}, v{T2}
    v_cmp_le_u32 vcc, 12, v{T0}
    v_cndmask_b32 v{T1}, v{T1}, v{T0}, vcc
    v_subrev_u32 v{T2}, 12, v{T0}
    v_cmp_le_u32 vcc, 16, v{T0}
    v_cndmask_b32 v{T1}, v{T1}, v{T2}, vcc
    v_cmp_eq_u32 {sr(sMASK2, 2)}, 20, v{T0}
    v_mov_b32 v{T2}, 20
    v_cndmask_b32 v{T1}, v{T1}, v{T2}, {sr(sMASK2, 2)}
    v_lshlrev_b32 v{T1}, 4, v{T1}
    v_lshrrev_b32 v{T2}, 1, v{G}
    s_lshl_b32 s{sT3}, s{sT0}, 1
    v_add_u32 v{T2}, s{sT3}, v{T2}
    v_mul_u32_u24 v{T2}, 384, v{T2}
    v_add_u32 v{T1}, v{T1}, v{T2}
    v_and_b32 v{T2}, 1, v{G}
    v_lshl_add_u32 v{T1}, v{T2}, 3, v{T1}
    v_add_u32 v{vKVST}, 1024, v{T1}
    v_mov_b32 v{T2}, {OOB}
    s_lshl_b32 s{sT3}, s{sT1}, 2
    v_cmp_gt_u32 vcc, s{sT3}, v{RHO}
    v_cndmask_b32 v{vKVST}, v{vKVST}, v{T2}, vcc
    s_add_u32 s{sT3}, s{sT1}, 12
    v_cmp_le_u32 vcc, s{sT3}, v{RHO}
    v_cndmask_b32 v{vKVST}, v{vKVST}, v{T2}, vcc
    s_cmp_lt_u32 s{sJ}, 4
    s_cselect_b64 vcc, 0, -1
    v_cndmask_b32 v{vKVST}, v{vKVST}, v{T2}, vcc
    s_mov_b64 {sr(sMASK, 2)}, -1""")
    a.raw("L_roledone:")
    a("s_nop 1")
    a(f"""v_and_b32 v{T0}, 31, v{L}
    v_lshrrev_b32 v{T1}, 5, v{L}
    v_mul_u32_u24 v{T1}, 384, v{T1}
    v_lshl_add_u32 v{T1}, v{T0}, 4, v{T1}
    v_mov_b32 v{T2}, {OOB}
    v_cmp_gt_u32 vcc, 21, v{T0}
    v_cndmask_b32 v{vVA}, v{T2}, v{T1}, vcc
    v_lshlrev_b32 v{T1}, 3, v{L}
    v_cmp_gt_u32 vcc, 32, v{L}
    v_cndmask_b32 v{vK2A}, v{T2}, v{T1}, vcc""")
    a(f"""s_mul_i32 s{sT2}, s{sW}, {16*160}
    s_add_u32 s{sT2}, s{sT2}, {L_QIMG}
    v_mul_u32_u24 v{vQW}, 160, v{RHO}
    v_lshl_add_u32 v{vQW}, v{G}, 3, v{vQW}
    v_add_u32 v{vQW}, s{sT2}, v{vQW}
    s_and_b32 s{sT2}, s{sW}, 1
    s_mul_i32 s{sT2}, s{sT2}, {32*160}
    s_add_u32 s{sT2}, s{sT2}, {L_QIMG}
    v_mul_u32_u24 v{vQR}, 160, v{T0}
    v_add_u32 v{vQR}, s{sT2}, v{vQR}""")
    for mu in range(4):
        a(f"s_xor_b32 s{sT2}, s{sW}, {mu}\n s_lshl_b32 s{sT2}, s{sT2}, 10\n v_add_u32 v{vHA+mu}, s{sT2}, v{vL16}")
    a(f"""v_lshl_add_u32 v{T1}, v{G}, 2, v{RR}
    v_mul_u32_u24 v{T1}, 160, v{T1}
    v_lshl_add_u32 v{T1}, v{CC}, 3, v{T1}
    s_mul_i32 s{sRING}, s{sW}, {L_RING}
    v_add_u32 v{vRB}, s{sRING}, v{T1}
    v_mul_u32_u24 v{T1}, 1280, v{RHO}
    v_lshl_add_u32 v{vOUT}, v{G}, 3, v{T1}""")
    a(f"""s_lshr_b32 s{sT2}, s{sW}, 1
    s_mul_i32 s{sT2}, s{sT2}, 5
    s_mul_i32 s{sT3}, s{sJ}, 10
    s_add_u32 s{sT2}, s{sT2}, s{sT3}
    s_and_b32 s{sT3}, s{sW}, 1
    s_lshl_b32 s{sT3}, s{sT3}, 11
    v_bfe_u32 v{T1}, v{L}, 4, 1
    v_lshlrev_b32 v{T1}, 10, v{T1}
    v_lshl_add_u32 v{T1}, v{RHO}, 4, v{T1}
    v_add_u32 v{T1}, s{sT3}, v{T1}""")
    for i, (lo, up) in enumerate(((0, 2), (1, 1), (3, 4))):
        a(f"""v_mov_b32 v{T0}, {lo}
        v_mov_b32 v{T2}, {up}
        v_cndmask_b32 v{T0}, v{T0}, v{T2}, {sr(sUP, 2)}
        v_add_u32 v{T0}, s{sT2}, v{T0}
        v_lshrrev_b32 v{T2}, 2, v{T0}
        v_lshlrev_b32 v{T2}, 12, v{T2}
        v_and_b32 v{T0}, 3, v{T0}
        v_lshl_add_u32 v{T2}, v{T0}, 8, v{T2}
        v_add_u32 v{vOST+i}, v{T2}, v{T1}""")
    a(f"v_mov_b32 v{T2}, {OOB}\n v_cndmask_b32 v{vOST+1}, v{vOST+1}, v{T2}, {sr(sUP, 2)}")
    a(f"""s_mul_i32 s{sHB}, s{sR}, {48*4096}
    s_add_u32 s{sHB}, s{sHB}, {WS_H}
    s_mul_i32 s{sOB}, s{sR}, {20*4096}
    s_add_u32 s{sOB}, s{sOB}, {WS_O}
    s_mul_i32 s{sT2}, s{sJ}, 160
    s_mul_i32 s{sW2B}, s{sW}, {384*1280}
    s_add_u32 s{sW2B}, s{sW2B}, s{sT2}
    s_mul_i32 s{sWOB}, s{sW}, {160*1280}
    s_add_u32 s{sWOB}, s{sWOB}, s{sT2}
    s_lshr_b32 s{sT2}, s{sW}, 1
    s_mul_i32 s{sKVLO}, s{sT2}, {32*KVREC}
    s_add_u32 s{sKVHI}, s{sKVLO}, {32*KVREC}""")
    if cfg.kvrot:
        a(f"s_lshr_b32 s{sT2}, s2, 3\n s_mul_i32 s{sT2}, s{sT2}, {KVREC}\n s_add_u32 s{sKV}, s{sKVLO}, s{sT2}")
    else:
        a(f"s_mov_b32 s{sKV}, s{sKVLO}")
    for i in range(64):
        a(f"v_accvgpr_write_b32 a{aO+i}, 0")

    a.wait(vm_tag="x", lds_all=True)
    a("s_barrier")
    stamp()
    accT, accN = vKVACC, vKVACC + 4
    LOOK = 4

    def kv_reads(ks):
        a(xread(ar(aXF + 4 * ks, 4), vXK, ks, 0))
        a(f"ds_read_b64_tr_b16 {ar(aKW + 4*ks, 2)}, v{vRK} offset:{1024*ks}")
        a(f"ds_read_b64_tr_b16 {ar(aKW + 4*ks + 2, 2)}, v{vRK} offset:{1024*ks + 256}")

    for ks in range(LOOK):
        kv_reads(ks)
    for ks in range(20):
        if ks + LOOK < 20:
            kv_reads(ks + LOOK)
        xf, wf = ar(aXF + 4 * ks, 4), ar(aKW + 4 * ks, 4)
        a(f"v_mfma_f32_16x16x32_bf16 {vr(accT, 4)}, {wf}, {xf}, {vr(accT, 4) if ks else 0}")
        a(f"v_mfma_f32_16x16x32_bf16 {vr(accN, 4)}, {xf}, {wf}, {vr(accN, 4) if ks else 0}")
    a(f"s_lshl_b32 s{sT2}, s{sR}, 1\n s_lshr_b32 s{sT3}, s{sW}, 1\n s_add_u32 s{sT2}, s{sT2}, s{sT3}\n s_mul_i32 s{sT2}, s{sT2}, {KVREC}")
    a(f"""v_mov_b32 v{vZ}, v{accT}
    v_cvt_pk_bf16_f32 v{accT}, v{accT}, v{accT+1}
    v_cvt_pk_bf16_f32 v{accT+1}, v{accT+2}, v{accT+3}
    v_cvt_pk_bf16_f32 v{accN}, v{accN}, v{accN+1}
    v_cvt_pk_bf16_f32 v{accN+1}, v{accN+2}, v{accN+3}
    v_mov_b32 v{T0}, 0x3f803f80
    v_cndmask_b32 v{accN}, v{accN}, v{T0}, {sr(sMASK2, 2)}
    v_cndmask_b32 v{accN+1}, v{accN+1}, v{T0}, {sr(sMASK2, 2)}
    v_cndmask_b32 v{accT}, v{accT}, v{accN}, {sr(sMASK, 2)}
    v_cndmask_b32 v{accT+1}, v{accT+1}, v{accN+1}, {sr(sMASK, 2)}""")
    a(f"buffer_store_dwordx2 {vr(accT, 2)}, v{vKVST}, {sr(S_WS, 4)}, s{sT2} offen sc1", tag="kvst")
    a(f"""v_mul_f32 v{vZ}, {hex(f2u(-math.log2(math.e)))}, v{vZ}
    v_exp_f32 v{vZ}, v{vZ}
    v_add_f32 v{vZ}, 1.0, v{vZ}
    v_rcp_f32 v{vZ}, v{vZ}""")

    def w1_issue(i):
        a(f"s_mul_i32 s{sT2}, s{sDC + (i >> 2)}, {128*3072}\n s_add_u32 s{sT2}, s{sT2}, s{sW1B}")
        if i & 3:
            a(f"s_add_u32 s{sT2}, s{sT2}, {(i & 3) * 32 * 3072}")
        for q in range(3):
            dma(vW1D + q, S_W1, f"s{sT2}", (sLW2, L_W1 + (i % 5) * 12288 + q * 1024), f"w1_{i}")

    sLW2 = sT1
    a(f"s_mul_i32 s{sLW2}, s{sW}, 3072")

    def q_reads(ks):
        p, kk = ks >> 2, ks & 3
        off = L_Q[p] - LR + kk * 5120
        base = vRA
        if off >= 40960:
            base, off = vRA2, off - 40960
        out = []
        for t in range(5):
            d = vWQF + 20 * (ks & 1) + 4 * t
            out.append(f"ds_read_b64_tr_b16 {vr(d, 2)}, v{base} offset:{off + 32*t}")
            out.append(f"ds_read_b64_tr_b16 {vr(d+2, 2)}, v{base} offset:{off + 32*t + 1280}")
        return out

    def q_mfma(ks):
        return [f"v_mfma_f32_16x16x32_bf16 {vr(vQACC + 4*t, 4)}, {vr(vWQF + 20*(ks&1) + 4*t, 4)}, {ar(aXF + 4*ks, 4)}, "
                f"{vr(vQACC + 4*t, 4) if ks else 0}" for t in range(5)]

    for p in range(5):
        if p == 3:
            a.wait_vm("kvst")
        a.wait(vm_tag=f"q{p}", lds_all=True)
        a("s_barrier")
        if p == 0:
            issue_q(3)
        elif p == 1:
            issue_q(4)
        elif p == 2:
            w1_issue(0)
        elif p == 3:
            a(f"""s_and_b32 s{sT2}, s2, 15
            s_lshl_b32 s{sT2}, s{sT2}, 4
            v_mov_b32 v{T0}, 1""")
            a(f"buffer_atomic_add v{T0}, v{vP0}, {sr(S_DBG, 4)}, s{sT2} offen sc1")
            w1_issue(1)
            w1_issue(2)
        else:
            w1_issue(3)
            w1_issue(4)
        for r_ in q_reads(4 * p):
            a(r_)
        if p:
            for m in q_mfma(4 * p - 1):
                a(m)
        for kk in range(3):
            ks = 4 * p + kk
            rd, mm = q_reads(ks + 1), q_mfma(ks)
            for t in range(5):
                a(mm[t])
                a(rd[2 * t])
                a(rd[2 * t + 1])
    for m in q_mfma(19):
        a(m)
    stamp()

    def h_reads(i):
        out = []
        b = i & 1
        for mt in range(2):
            out.append(xread(vr(vXF + 8 * b + 4 * mt, 4), vXH, i, 2048 * mt))
        for t in range(6):
            d = vW1F + 24 * b + 4 * t
            off = (i % 5) * 12288
            out.append(f"ds_read_b64_tr_b16 {vr(d, 2)}, v{vR1+t} offset:{off}")
            out.append(f"ds_read_b64_tr_b16 {vr(d+2, 2)}, v{vR1+t} offset:{off + 8*384}")
        return out

    def h_mfma(i):
        b = i & 1
        out = []
        for t in range(6):
            for mt in range(2):
                acc = vr(vHACC + 4 * (6 * mt + t), 4)
                out.append(f"v_mfma_f32_16x16x32_bf16 {acc}, {vr(vW1F + 24*b + 4*t, 4)}, {vr(vXF + 8*b + 4*mt, 4)}, {acc if i else 0}")
        return out

    def kv_load(n):
        b = vKV + 14 * (n % 3)
        out = [f"buffer_load_dwordx4 {vr(b, 4)}, v{vL16}, {sr(S_WS, 4)}, s{sKV} offen sc1",
               f"buffer_load_dwordx2 {vr(b+12, 2)}, v{vK2A}, {sr(S_WS, 4)}, s{sKV} offen offset:2560 sc1",
               f"buffer_load_dwordx4 {vr(b+4, 4)}, v{vVA}, {sr(S_WS, 4)}, s{sKV} offen offset:1024 sc1",
               f"buffer_load_dwordx4 {vr(b+8, 4)}, v{vVA}, {sr(S_WS, 4)}, s{sKV} offen offset:1792 sc1",
               f"s_add_u32 s{sKV}, s{sKV}, {KVREC}",
               f"s_cmp_ge_u32 s{sKV}, s{sKVHI}",
               f"s_cselect_b32 s{sKV}, s{sKVLO}, s{sKV}"]
        return out

    def spin(label, vaddr, srdreg, soff, expect):
        a(f"v_cmp_ne_u32 vcc, {expect}, v{vPV}")
        a(f"s_cbranch_vccz {label}_ok")
        a(f"s_mov_b32 s{sSPIN}, 0x40000")
        a.raw(f"{label}_spin:")
        a.raw(f"    s_sleep 1")
        a.raw(f"    buffer_load_dword v{vPV}, v{vaddr}, {sr(srdreg, 4)}, {soff} offen sc1")
        a.raw(f"    s_waitcnt vmcnt(0)")
        a.raw(f"    v_cmp_ne_u32 vcc, {expect}, v{vPV}")
        a.raw(f"    s_nop 1")
        a.raw(f"    s_cbranch_vccz {label}_ok")
        a.raw(f"    s_sub_u32 s{sSPIN}, s{sSPIN}, 1")
        a.raw(f"    s_cmp_lg_u32 s{sSPIN}, 0")
        a.raw(f"    s_cbranch_scc1 {label}_spin")
        a.raw(f"{label}_ok:")

    vPV, vPA = 248, 249
    a.wait(vm_tag="w1_0", lds_all=True)
    a("s_barrier")
    for r_ in h_reads(0):
        a(r_)
    a(f"s_mov_b32 s{sT2}, {hex(f2u(QSCALE))}")
    for t in range(5):
        q = vQACC + 4 * t
        for i in range(4):
            a(f"v_mul_f32 v{q+i}, s{sT2}, v{q+i}")
        a(f"v_cvt_pk_bf16_f32 v{q}, v{q}, v{q+1}\n v_cvt_pk_bf16_f32 v{q+1}, v{q+2}, v{q+3}")
        a(f"ds_write_b64 v{vQW}, {vr(q, 2)} offset:{32*t}")
    a(f"""s_lshl_b32 s{sT2}, s{sW}, 8
    s_add_u32 s{sT2}, s{sT2}, {L_G}
    v_lshlrev_b32 v{T0}, 2, v{L}
    v_add_u32 v{T0}, s{sT2}, v{T0}""")
    a(f"ds_write_b32 v{T0}, v{vZ}")
    for i in range(20):
        if i == 16:
            a.wait_regs(f"v{vPV}")
            a(f"s_cmp_lg_u32 s{sW}, 0\n s_cbranch_scc1 L_f1_ok")
            spin("L_f1", vPA, S_DBG, 0, 16)
        a.wait(vm_tag=f"w1_{i+1}" if i < 19 else None, lds_all=True)
        a("s_barrier")
        if i + 5 < 20:
            w1_issue(i + 5)
        if i == 0:
            a(f"s_lshr_b32 s{sT2}, s{sW}, 1\n s_mul_i32 s{sT2}, s{sT2}, 80")
            a(f"v_lshrrev_b32 v{T0}, 5, v{L}\n v_lshl_add_u32 v{T0}, v{T0}, 4, v{vQR}")
            a(f"v_add_u32 v{T1}, s{sT2}, v{T0}\n v_subrev_u32 v{T0}, s{sT2}, v{T0}")
            a(f"v_add_u32 v{T2}, s{sT2}, v{vQR}\n v_subrev_u32 v{vQR}, s{sT2}, v{vQR}")
            for tau in range(4):
                b1, b2 = (T1, T2) if tau < 2 else (T0, vQR)
                o = 40 * tau
                a(f"ds_read2_b64 {vr(vQ + 6*tau, 4)}, v{b1} offset0:{o//8} offset1:{o//8 + 1}")
                a(f"ds_read_b64 {vr(vQ + 6*tau + 4, 2)}, v{b2} offset:{o + 32}")
            a(f"""s_and_b32 s{sT2}, s{sW}, 1
            s_lshl_b32 s{sT2}, s{sT2}, 9
            s_add_u32 s{sT2}, s{sT2}, {L_G + 192}
            v_lshlrev_b32 v{vPA}, 2, v{RHO}
            v_add_u32 v{vPA}, s{sT2}, v{vPA}
            v_bfe_u32 v{vPV}, v{L}, 4, 1
            v_lshl_add_u32 v{vPV}, v{vPV}, 8, v{vPA}""")
            a(f"ds_read_b32 v{vOM0}, v{vPA}\n ds_read_b32 v{vOM1}, v{vPA} offset:256\n ds_read_b32 v{vGO}, v{vPV}")
        if i == 1:
            a(f"v_sub_f32 v{vOM0}, 1.0, v{vOM0}\n v_sub_f32 v{vOM1}, 1.0, v{vOM1}")
        if i == 13:
            a(f"""v_and_b32 v{vPA}, 15, v{L}
            v_lshlrev_b32 v{vPA}, 4, v{vPA}
            s_cmp_eq_u32 s{sW}, 0
            s_cselect_b32 s{sT2}, 0, {OOB}
            v_or_b32 v{vPA}, s{sT2}, v{vPA}""")
            a(f"buffer_load_dword v{vPV}, v{vPA}, {sr(S_DBG, 4)}, 0 offen sc1")
        if i == 16:
            for x_ in kv_load(0) + kv_load(1):
                a(x_)
        rd = h_reads(i + 1) if i < 19 else []
        mm = h_mfma(i)
        k = 0
        for n, m in enumerate(mm):
            a(m)
            take = 2 if n < 2 else 1
            for _ in range(take):
                if k < len(rd):
                    a(rd[k]); k += 1
    stamp()
    a(f"""s_mul_i32 s{sT2}, s{sJ}, 6
    s_lshr_b32 s{sT3}, s{sW}, 1
    s_mul_i32 s{sT3}, s{sT3}, 3
    s_add_u32 s{sT2}, s{sT2}, s{sT3}
    s_lshl_b32 s{sT2}, s{sT2}, 12
    s_and_b32 s{sT3}, s{sW}, 1
    s_lshl_b32 s{sT3}, s{sT3}, 11
    s_add_u32 s{sT2}, s{sT2}, s{sT3}
    s_add_u32 s{sT2}, s{sT2}, s{sHB}""")
    for u in range(3):
        for mt in range(2):
            om = vOM0 if mt == 0 else vOM1
            d = vW1F + 4 * (2 * u + mt)
            for tt in range(2):
                acc = vHACC + 4 * (6 * mt + 2 * u + tt)
                for h in range(2):
                    a(f"v_pk_mul_f32 {vr(acc + 2*h, 2)}, {vr(acc + 2*h, 2)}, {vr(om, 2)} op_sel_hi:[1,0]")
                for h in range(2):
                    a(f"v_cvt_pk_bf16_f32 v{d + 2*tt + h}, v{acc + 2*h}, v{acc + 2*h + 1}")
            for i in range(4):
                a(f"v_pk_max_i16 v{d+i}, v{d+i}, 0")
            a(f"buffer_store_dwordx4 {vr(d, 4)}, v{vL16}, {sr(S_WS, 4)}, s{sT2} offen offset:{1024*mt} sc1", tag="hst")
        if u < 2:
            a(f"s_add_u32 s{sT2}, s{sT2}, 4096")
    if cfg.stop == "A":
        a.wait_all()
        a("s_branch L_end")

    def ring_issue(n):
        out = []
        if n < 12:
            out.append([f"s_add_u32 s{sT2}, s{sW2B}, {n*32*1280}"])
            vs, sd = vSB, S_W2
        else:
            out.append([f"s_add_u32 s{sT2}, s{sWOB}, {(n-12)*32*1280}"])
            vs, sd = vSA, S_WO
        for q in range(5):
            out.append([f"s_add_u32 m0, s{sRING}, {(n % NSLOT)*5120 + q*1024}"])
            out.append([(f"buffer_load_dwordx4 v{vs+q}, {sr(sd, 4)}, s{sT2} offen lds", f"ring{n}")])
        return out

    def emit_item(x):
        if callable(x):
            x()
        elif isinstance(x, tuple):
            a(x[0], tag=x[1])
        else:
            a(x)

    NT = 128
    side = {}

    def add_side(tile, groups):
        side.setdefault(tile, []).extend(groups)

    for n in range(2, 32):
        ld = kv_load(n)
        add_side(4 * (n - 2) + 1, [[ld[0]], [ld[1]], [ld[2]], [ld[3]]])
        add_side(4 * (n - 2) + 2, [[ld[4]], [ld[5], ld[6]]])
    groups = []
    for n in range(NSLOT):
        groups += ring_issue(n)
    per = 4
    t_ = 3
    while groups:
        add_side(t_, groups[:per]); groups = groups[per:]
        t_ += 4 if (t_ % 4) == 3 else 3
        if t_ % 4 == 3 and False:
            pass

    def f2_flag():
        a.wait_vm("hst")
        a(f"s_lshl_b32 s{sT3}, s{sJ}, 2\n s_add_u32 s{sT3}, s{sT3}, s{sW}\n s_lshl_b32 s{sT3}, s{sT3}, 2\n s_add_u32 s{sT3}, s{sT3}, s{sF2}")
        a(f"v_mov_b32 v{T0}, 1")
        a(f"buffer_store_dword v{T0}, v{vPOLL}, {sr(S_WS, 4)}, s{sT3} offen sc1")

    def f2_poll():
        a(f"v_and_b32 v{vPA}, 7, v{L}\n v_lshlrev_b32 v{vPA}, 2, v{vPA}\n s_lshl_b32 s{sT3}, s{sW}, 5\n s_add_u32 s{sT0}, s{sT3}, s{sF2}")
        a(f"buffer_load_dword v{vPV}, v{vPA}, {sr(S_WS, 4)}, s{sT0} offen sc1")

    def f2_check():
        a.wait_regs(f"v{vPV}")
        spin("L_f2", vPA, S_WS, f"s{sT0}", 1)
        a(f"s_mul_i32 s{sT0}, s{sW}, {12*4096}\n s_add_u32 s{sT0}, s{sT0}, s{sHB}")

    add_side(8, [[f2_flag]])
    add_side(4 * 9, [[f2_poll]])
    add_side(4 * 11, [[f2_check]])
    hl = []
    for ks in range(12):
        for mu in range(4):
            hl.append([f"buffer_load_dwordx4 {ar(aH + 16*ks + 4*mu, 4)}, v{vHA+mu}, {sr(S_WS, 4)}, s{sT0} offen sc1"])
        hl.append([f"s_add_u32 s{sT0}, s{sT0}, 4096"])
    t_ = 4 * 11 + 3
    while hl:
        add_side(t_, hl[:4]); hl = hl[4:]
        t_ += 4

    def qk(i):
        n, tau = i >> 2, i & 3
        kb, s = vKV + 14 * (n % 3), vS + 16 * (i % 3)
        return [f"v_mfma_f32_32x32x16_bf16 {vr(s, 16)}, {vr(kb, 4)}, {vr(vQ + 6*tau, 4)}, 0",
                f"v_mfma_f32_32x32x8_bf16 {vr(s, 16)}, {vr(kb+12, 2)}, {vr(vQ + 6*tau + 4, 2)}, {vr(s, 16)}"]

    def pv(i):
        n, tau = i >> 2, i & 3
        kb, s = vKV + 14 * (n % 3), vS + 16 * (i % 3)
        o = ar(aO + 16 * tau, 16)
        return [f"v_smfmac_f32_32x32x32_bf16 {o}, {vr(kb+4, 4)}, {vr(s, 8)}, v{vIDX}",
                f"v_smfmac_f32_32x32x32_bf16 {o}, {vr(kb+8, 4)}, {vr(s+8, 8)}, v{vIDX}"]

    stamp()
    for m in qk(0):
        a(m)
    for i in range(NT):
        ms = (qk(i + 1) if i + 1 < NT else [None, None]) + (pv(i - 1) if i else [None, None])
        s = vS + 16 * (i % 3)
        grp = list(side.get(i, []))
        nslots = sum(m is not None for m in ms)
        for k, m in enumerate(ms):
            if m is not None:
                a(m)
                take = -(-len(grp) // nslots)
                nslots -= 1
                for g_ in grp[:take]:
                    for x_ in g_:
                        emit_item(x_)
                grp = grp[take:]
            for e in range(4):
                a(f"v_exp_f32 v{s + 4*k + e}, v{s + 4*k + e}")
    for m in pv(NT - 1):
        a(m)
    stamp()

    a.raw("L_combine:")
    a(f"s_mul_i32 s{sT2}, s{sW}, 6144\n s_add_u32 s{sT2}, s{sT2}, {L_SCR}\n v_add_u32 v{T0}, s{sT2}, v{vL16}")
    a(f"s_lshl_b32 s{sT2}, s{sW}, 10\n s_add_u32 s{sT2}, s{sT2}, {L_LSC}\n v_add_u32 v{T1}, s{sT2}, v{vL16}")
    a(f"s_xor_b32 s{sT3}, s{sW}, 2\n s_mul_i32 s{sT3}, s{sT3}, 6144\n s_add_u32 s{sT3}, s{sT3}, {L_SCR}\n v_add_u32 v{T2}, s{sT3}, v{vL16}")
    vLC = vTMP + 60
    a(f"""v_and_b32 v{vLC}, 31, v{L}
    v_lshlrev_b32 v{vLC}, 4, v{vLC}
    v_lshrrev_b32 v{vLC+1}, 5, v{L}
    v_lshl_add_u32 v{vLC}, v{vLC+1}, 10, v{vLC}
    v_add_u32 v{vLC}, {L_LSC + 512}, v{vLC}""")
    for tau in range(2, 4):
        for q in range(3):
            a(f"ds_write_b128 v{T0}, {ar(aO + 16*tau + 4*q, 4)} offset:{((tau-2)*3 + q) * 1024}")
    vLL = vTMP + 48
    for tau in range(4):
        a(f"v_accvgpr_read_b32 v{vLL+tau}, a{aO + 16*tau + 8}")
    a(f"ds_write_b128 v{T1}, {vr(vLL, 4)}")
    vOW, vOP = vTMP, vTMP + 24
    for tau in range(2):
        for i in range(12):
            a(f"v_accvgpr_read_b32 v{vOW + 12*tau + i}, a{aO + 16*tau + i}")
    a.wait(lds_all=True)
    a("s_barrier")
    a(f"ds_read_b128 {vr(vLL, 4)}, v{vLC}\n ds_read_b128 {vr(vLL+4, 4)}, v{vLC} offset:2048")
    for q in range(6):
        a(f"ds_read_b128 {vr(vOP + 4*q, 4)}, v{T2} offset:{1024*q}")
    for i in range(4):
        a(f"v_add_f32 v{vLL+i}, v{vLL+i}, v{vLL + 4 + (i ^ 2)}")
    a(f"""s_mov_b32 s{sT3}, {hex(f2u(2.0**60))}
    v_min3_f32 v{vLL+4}, v{vLL}, v{vLL+1}, v{vLL+2}
    v_min_f32 v{vLL+4}, v{vLL+4}, v{vLL+3}
    v_add_f32 v{vLL}, v{vLL}, v{vLL+1}
    v_add_f32 v{vLL+2}, v{vLL+2}, v{vLL+3}
    v_add_f32 v{vLL}, v{vLL}, v{vLL+2}
    v_cmp_nle_f32 vcc, {hex(f2u(2.0**-60))}, v{vLL+4}
    v_cmp_nge_f32 {sr(sMASK, 2)}, s{sT3}, v{vLL}""")
    a(f"s_or_b64 vcc, vcc, {sr(sMASK, 2)}")
    a(f"s_cmp_eq_u32 s{sFB}, 0\n s_cselect_b64 vcc, vcc, 0")
    a("s_cbranch_vccnz L_fallback")
    for i in range(24):
        a(f"v_add_f32 v{vOW+i}, v{vOW+i}, v{vOP+i}")
    for tau in range(2):
        a(f"v_mov_b32 v{vLL+tau}, v{vOW + 12*tau + 8}")
    for tau in range(2):
        a(f"v_permlane32_swap_b32 v{vOW + 12*tau + 8}, v{vLL+tau}")
    for tau in range(2):
        a(f"v_rcp_f32 v{vLL+2*tau+4}, v{vLL+tau}")
    for tau in range(2):
        a(f"v_mul_f32 v{vLL+2*tau+4}, v{vGO}, v{vLL+2*tau+4}")
    vP = vOP
    for tau in range(2):
        for i in range(6):
            x_ = vOW + 12 * tau + 2 * i
            a(f"v_pk_mul_f32 {vr(x_, 2)}, {vr(x_, 2)}, {vr(vLL + 2*tau + 4, 2)} op_sel_hi:[1,0]")
        for i in range(6):
            x_ = vOW + 12 * tau + 2 * i
            a(f"v_cvt_pk_bf16_f32 v{vP + 6*tau + i}, v{x_}, v{x_+1}")
    a(f"v_permlane32_swap_b32 v{vP+2}, v{vP+6}\n v_permlane32_swap_b32 v{vP+3}, v{vP+7}")
    a(f"v_cndmask_b32 v{vP+10}, v{vP+10}, v{vP+6}, {sr(sUP, 2)}\n v_cndmask_b32 v{vP+11}, v{vP+11}, v{vP+7}, {sr(sUP, 2)}")
    for i in range(3):
        a(f"buffer_store_dwordx4 {vr(vP + 4*i, 4)}, v{vOST+i}, {sr(S_WS, 4)}, s{sOB} offen sc1", tag="ost")
    stamp()

    a(f"v_subrev_u32 v{vRA}, {LR}, v{vRA}\n v_add_u32 v{vRA}, s{sRING}, v{vRA}")

    def c_reads(n):
        out = []
        for t in range(5):
            d = vCW + 20 * (n & 1) + 4 * t
            off = (n % NSLOT) * 5120 + 32 * t
            if n < 12:
                out += [f"ds_read_b64_tr_b16 {vr(d, 2)}, v{vRB} offset:{off}", f"ds_read_b64_tr_b16 {vr(d+2, 2)}, v{vRB} offset:{off + 16*160}"]
            else:
                out += [f"ds_read_b64_tr_b16 {vr(d, 2)}, v{vRA} offset:{off}", f"ds_read_b64_tr_b16 {vr(d+2, 2)}, v{vRA} offset:{off + 8*160}"]
        return out

    def c_mfma(n):
        out = []
        for mu in range(4):
            for t in range(5):
                acc = vr(vCACC + 4 * (5 * mu + t), 4)
                act = ar(aH + 16 * (n if n < 12 else n - 12) + 4 * mu, 4)
                out.append(f"v_mfma_f32_16x16x32_bf16 {acc}, {vr(vCW + 20*(n&1) + 4*t, 4)}, {act}, {acc if n else 0}")
        return out

    a.wait_vm("ring0")
    for r_ in c_reads(0):
        a(r_)
    for n in range(17):
        extra = []
        if n == cfg.f3_wait_step:
            a.wait_vm("ost")
            a("s_barrier")
            a(f"s_lshl_b32 s{sT3}, s{sJ}, 2\n s_add_u32 s{sT3}, s{sT3}, s{sF3}")
            a(f"v_mov_b32 v{T0}, 1")
            a(f"buffer_store_dword v{T0}, v{vP0}, {sr(S_WS, 4)}, s{sT3} offen sc1")
        if n == cfg.f3_poll_step:
            a(f"buffer_load_dword v{vPV}, v{vPA}, {sr(S_WS, 4)}, s{sF3} offen sc1")
        if n == cfg.f3_check_step:
            a.wait_regs(f"v{vPV}")
            spin("L_f3", vPA, S_WS, f"s{sF3}", 1)
            a(f"s_mul_i32 s{sT0}, s{sW}, {5*4096}\n s_add_u32 s{sT0}, s{sT0}, s{sOB}")
            for ks in range(5):
                for mu in range(4):
                    extra.append([f"buffer_load_dwordx4 {ar(aH + 16*ks + 4*mu, 4)}, v{vHA+mu}, {sr(S_WS, 4)}, s{sT0} offen sc1"])
                extra.append([f"s_add_u32 s{sT0}, s{sT0}, 4096"])
        a.wait(lds_all=True)
        if n + NSLOT < 17:
            extra = ring_issue(n + NSLOT) + extra
        if n + 1 < 17:
            rd = c_reads(n + 1)
        else:
            rd = []
        mm = c_mfma(n)
        k = 0
        for i_, m in enumerate(mm):
            a(m)
            if extra:
                take = -(-len(extra) // max(1, 10 - i_)) if i_ < 10 else len(extra)
                for g_ in extra[:take]:
                    for x_ in g_:
                        emit_item(x_)
                extra = extra[take:]
            if i_ >= 8 and k < len(rd):
                if k == 0:
                    a.wait_vm(f"ring{n+1}")
                a(rd[k]); k += 1
        while k < len(rd):
            a(rd[k]); k += 1
    stamp()
    a(f"v_add_u32 v{T0}, s{sRING}, v{vL16}")
    for mu in range(1, 4):
        for t in range(5):
            a(f"ds_write_b128 v{T0}, {vr(vCACC + 4*(5*mu + t), 4)} offset:{(mu-1)*5120 + 1024*t}")
    for mu in range(1, 4):
        a(f"s_xor_b32 s{sT2}, s{sW}, {mu}\n s_mul_i32 s{sT2}, s{sT2}, {L_RING}\n v_add_u32 v{vTMP+mu}, s{sT2}, v{vL16}")
    a(f"""s_lshl_b32 s{sT2}, s{sR}, 2
    s_add_u32 s{sT2}, s{sT2}, s{sW}
    s_mul_i32 s{sT2}, s{sT2}, {16*1280}
    s_mul_i32 s{sT3}, s{sJ}, 160
    s_add_u32 s{sT2}, s{sT2}, s{sT3}""")
    a.wait(lds_all=True)
    a("s_barrier")
    vRD = vCACC + 20
    for t in range(5):
        for mu in range(1, 4):
            a(f"ds_read_b128 {vr(vRD + 4*(3*t + mu - 1), 4)}, v{vTMP+mu} offset:{(mu-1)*5120 + 1024*t}")
    for t in range(5):
        acc = vCACC + 4 * t
        x_ = vRD + 12 * t
        for h in range(2):
            a(f"v_pk_add_f32 {vr(acc + 2*h, 2)}, {vr(acc + 2*h, 2)}, {vr(x_ + 2*h, 2)}")
            a(f"v_pk_add_f32 {vr(x_ + 4 + 2*h, 2)}, {vr(x_ + 4 + 2*h, 2)}, {vr(x_ + 8 + 2*h, 2)}")
        for h in range(2):
            a(f"v_pk_add_f32 {vr(acc + 2*h, 2)}, {vr(acc + 2*h, 2)}, {vr(x_ + 4 + 2*h, 2)}")
        a(f"v_cvt_pk_bf16_f32 v{acc}, v{acc}, v{acc+1}\n v_cvt_pk_bf16_f32 v{acc+1}, v{acc+2}, v{acc+3}")
        a(f"buffer_store_dwordx2 {vr(acc, 2)}, v{vOUT}, {sr(S_OUT, 4)}, s{sT2} offen offset:{32*t}")
    if cfg.diag:
        a.wait_all()
        stamp()
        a.wait_regs(sr(sST, 18))
        a(f"s_lshl_b32 s{sT2}, s2, 2\n s_add_u32 s{sT2}, s{sT2}, s{sW}\n s_lshl_b32 s{sT2}, s{sT2}, 6\n s_add_u32 s{sT2}, s{sT2}, {WS_DIAG}")
        for i in range(nstamp[0]):
            a(f"s_sub_u32 s{sT3}, s{sST + 2*i}, s{sST}\n v_mov_b32 v{T0}, s{sT3}")
            a(f"buffer_store_dword v{T0}, v{vPOLL}, {sr(S_WS, 4)}, s{sT2} offen offset:{4*i}")
        a(f"v_mov_b32 v{T0}, s{sST}")
        a(f"buffer_store_dword v{T0}, v{vPOLL}, {sr(S_WS, 4)}, s{sT2} offen offset:60")
    a("s_endpgm")

    a.raw("L_fallback:")
    a.assume_drained()
    a.hist = []
    fallback(a, cfg)
    a.raw("L_end:")
    a.raw("    s_endpgm")
    return a


def fallback(a, cfg):
    T0, T1, T2 = vT, vT + 1, vT + 2
    vM = vTMP
    kb, s = vKV, vS
    a("s_waitcnt vmcnt(0) lgkmcnt(0)")
    a(f"s_mov_b32 s{sFB}, 1")

    def loads(with_v):
        a.raw(f"    buffer_load_dwordx4 {vr(kb, 4)}, v{vL16}, {sr(S_WS, 4)}, s{sKV} offen sc1")
        a.raw(f"    buffer_load_dwordx2 {vr(kb+12, 2)}, v{vK2A}, {sr(S_WS, 4)}, s{sKV} offen offset:2560 sc1")
        if with_v:
            a.raw(f"    buffer_load_dwordx4 {vr(kb+4, 4)}, v{vVA}, {sr(S_WS, 4)}, s{sKV} offen offset:1024 sc1")
            a.raw(f"    buffer_load_dwordx4 {vr(kb+8, 4)}, v{vVA}, {sr(S_WS, 4)}, s{sKV} offen offset:1792 sc1")
        a.raw("    s_waitcnt vmcnt(0)")

    def qk(tau):
        a(f"v_mfma_f32_32x32x16_bf16 {vr(s, 16)}, {vr(kb, 4)}, {vr(vQ + 6*tau, 4)}, 0")
        a(f"v_mfma_f32_32x32x8_bf16 {vr(s, 16)}, {vr(kb+12, 2)}, {vr(vQ + 6*tau + 4, 2)}, {vr(s, 16)}")

    for tau in range(4):
        a(f"v_mov_b32 v{vM+tau}, 0xff800000")
    a(f"s_mov_b32 s{sKV}, s{sKVLO}")
    a.raw("L_fb_max:")
    loads(False)
    for tau in range(4):
        qk(tau)
        for i in range(0, 16, 2):
            a(f"v_max3_f32 v{vM+tau}, v{vM+tau}, v{s+i}, v{s+i+1}")
        a("s_nop 7")
    a(f"s_add_u32 s{sKV}, s{sKV}, {KVREC}\n s_cmp_lt_u32 s{sKV}, s{sKVHI}\n s_cbranch_scc1 L_fb_max")
    for tau in range(4):
        a(f"v_mov_b32 v{vM+4+tau}, v{vM+tau}")
    for tau in range(4):
        a(f"v_permlane32_swap_b32 v{vM+tau}, v{vM+4+tau}")
    for tau in range(4):
        a(f"v_max_f32 v{vM+tau}, v{vM+tau}, v{vM+4+tau}")
    a("s_barrier")
    a(f"s_lshl_b32 s{sT2}, s{sW}, 10\n s_add_u32 s{sT2}, s{sT2}, {L_LSC}\n v_add_u32 v{T1}, s{sT2}, v{vL16}")
    a(f"s_xor_b32 s{sT2}, s{sW}, 2\n s_lshl_b32 s{sT2}, s{sT2}, 10\n s_add_u32 s{sT2}, s{sT2}, {L_LSC}\n v_add_u32 v{T2}, s{sT2}, v{vL16}")
    a(f"ds_write_b128 v{T1}, {vr(vM, 4)}")
    a.wait(lds_all=True)
    a("s_barrier")
    a(f"ds_read_b128 {vr(vM+4, 4)}, v{T2}")
    for tau in range(4):
        a(f"v_max_f32 v{vM+tau}, v{vM+tau}, v{vM + 4 + (tau ^ 2)}")
    a("s_barrier")
    for i in range(64):
        a(f"v_accvgpr_write_b32 a{aO+i}, 0")
    a(f"s_mov_b32 s{sKV}, s{sKVLO}")
    a.raw("L_fb_pv:")
    loads(True)
    for tau in range(4):
        qk(tau)
        for i in range(16):
            a(f"v_sub_f32 v{s+i}, v{s+i}, v{vM+tau}")
        for i in range(16):
            a(f"v_exp_f32 v{s+i}, v{s+i}")
        o = ar(aO + 16 * tau, 16)
        a(f"v_smfmac_f32_32x32x32_bf16 {o}, {vr(kb+4, 4)}, {vr(s, 8)}, v{vIDX}")
        a(f"v_smfmac_f32_32x32x32_bf16 {o}, {vr(kb+8, 4)}, {vr(s+8, 8)}, v{vIDX}")
    a("s_nop 15")
    a(f"s_add_u32 s{sKV}, s{sKV}, {KVREC}\n s_cmp_lt_u32 s{sKV}, s{sKVHI}\n s_cbranch_scc1 L_fb_pv")
    a("s_nop 15")
    a("s_branch L_combine")


HEADER = f"""; Fused gated mix of MQA attention and a ReLU FFN (generated by a hand-written generator, gen/gen.py).
; One workgroup per CU; workgroup (r, j) owns 64 rows, 4 heads / 192 hidden columns / 80 output columns.
; @launch grid=(256,1,1) block=(256,1,1) lds=163840
.amdgcn_target "amdgcn-amd-amdhsa--gfx950"
.text
.globl {NAME}_kernel
.p2align 8
.type {NAME}_kernel,@function
"""
FOOTER = f"""
.section .rodata,"a"
.p2align 6
.amdhsa_kernel {NAME}_kernel
  .amdhsa_next_free_vgpr 512
  .amdhsa_next_free_sgpr 102
  .amdhsa_accum_offset 256
  .amdhsa_group_segment_fixed_size 0
  .amdhsa_kernarg_size 96
  .amdhsa_user_sgpr_count 2
  .amdhsa_user_sgpr_kernarg_segment_ptr 1
  .amdhsa_system_sgpr_workgroup_id_x 1
  .amdhsa_float_denorm_mode_32 3
.end_amdhsa_kernel
"""


def build(**kw):
    cfg = Cfg()
    for k, v in kw.items():
        assert hasattr(cfg, k), k
        setattr(cfg, k, v)
    a = gen(cfg)
    return HEADER + a.text() + FOOTER, a


if __name__ == "__main__":
    kw = {}
    out = f"cdna_kernels/{NAME}.s"
    for arg in sys.argv[1:]:
        k, v = arg.split("=")
        if k == "out":
            out = v
        else:
            kw[k] = eval(v)
    txt, a = build(**kw)
    open(out, "w").write(txt)
    print("written", out, "lines", txt.count("\n"), "nop states inserted", a.nops_inserted)
    if os.environ.get("NOPLOG"):
        print("\n".join(a.log))
```

```python
import sys, math, struct, os
sys.path.insert(0, os.path.dirname(os.path.abspath(__file__)))
from asmlib import Asm, vr, ar, sr

NAME = "gated_mix__grouped_kv_mqa__dense_activation_relu__prompt"
OOB = 0x80000000


def f2u(x):
    return struct.unpack("<I", struct.pack("<f", x))[0]


WS_KV = 0
KVREC = 2816
WS_F2 = 0x30000
WS_F3 = 0x32000
WS_DIAG = 0x38000
WS_H = 0x100000
WS_O = 0x800000
WS_SIZE = 0x1000000

LX = 0
LR = 81920
L_KVIMG = LR + 61440
L_Q = [LR, LR + 20480, LR + 40960, L_KVIMG, LR]
L_W1 = LR + 20480
L_QIMG = LR
L_G = LR + 10240
L_RING = 30720
NSLOT = 6
L_SCR = 122880
L_LSC = 147456

S_X, S_WQ, S_WKV, S_WO, S_W1, S_W2, S_GATE, S_OUT, S_DBG, S_WS = 4, 8, 12, 16, 20, 24, 28, 32, 36, 40
S_WV = 44
sW, sR, sJ, sROT = 46, 47, 48, 49
sDC = 50
sT0, sT1, sT2, sT3 = 56, 57, 58, 59
sXB, sQB, sW1B = 60, 61, 62
sLW = 63
sMASK = 64
sMASK2 = 66
sKV = 68
sKVLO, sKVHI = 69, 70
sHB = 71
sW2B, sWOB = 72, 73
sRING = 74
sOB = 75
sF2, sF3 = 76, 77
sSPIN = 78
sUP = 80
sFB = 82
sRT = 55
sST = 84

vL16, vIDX, vVA, vK2A = 1, 2, 3, 4
vSA, vSB = 5, 10
vRA, vRA2, vRB = 15, 16, 17
vGO, vZ, vOM0, vKVST, vOM1 = 18, 19, 20, 21, 22
vLANE = 23
vOUT = 24
vOST = 25
vPOLL = 28
vT = 29
vXK = 32
vXH = 36
vR1 = 40
vW1D = 46
vXD, vRK, vKW = 49, 50, 51
vKG = 52
vQW = 58
vQR = 59
vHA = 60
vSTG = 64
vQACC = 64
vKVACC = 88
vWQF = 96
vHACC = 136
vXF = 184
vW1F = 200
vQ = 64
vKV = 88
vS = 136
vCACC = 88
vCW = 168
vTMP = 184
vP0 = 0
vJUNK = 255
vP0T = 246
aXF, aKW = 0, 80
aH, aO = 0, 192

QSCALE = math.log2(math.e) / math.sqrt(20.0)


class Cfg:
    diag = False
    rot = True
    mapping = "2d"
    kvrot = True
    stop = None
    f3_wait_step = 4
    f3_poll_step = 7
    f3_check_step = 10
    warm_code = True
    dbg_wg = 0


def srd(a, s, size):
    a(f"s_mov_b32 s{s+2}, {size}")
    a(f"s_mov_b32 s{s+3}, 0x20000")


def gen(cfg):
    a = Asm()
    nstamp = [0]

    def stamp():
        if cfg.diag:
            a(f"s_memtime {sr(sST + 2 * nstamp[0], 2)}")
            nstamp[0] += 1
            assert nstamp[0] <= 9

    def dma(vaddr, srdreg, soff, ldsaddr, tag):
        s, c = ldsaddr
        if s is None:
            a(f"s_mov_b32 m0, {c}")
        else:
            a(f"s_add_u32 m0, s{s}, {c}")
        a(f"buffer_load_dwordx4 v{vaddr}, {sr(srdreg, 4)}, {soff} offen lds", tag=tag)

    a.raw(f"{NAME}_kernel:")
    a("s_cmp_ge_u32 s2, 256")
    a("s_cbranch_scc1 L_end")
    stamp()
    if cfg.diag == "dbg":
        a(f"s_memrealtime {sr(sSPIN, 2)}")
    for s, off in ((S_X, 0), (S_WKV, 16), (S_WV, 24), (S_GATE, 64), (S_WQ, 8), (S_WS, 88), (S_W1, 48), (S_DBG, 80),
                   (S_W2, 56), (S_WO, 32), (S_OUT, 72)):
        a(f"s_load_dwordx2 {sr(s, 2)}, s[0:1], {off}")
    a(f"v_lshrrev_b32 v{vT}, 6, v0")
    a(f"v_and_b32 v{vLANE}, 63, v0")
    a(f"v_readfirstlane_b32 s{sW}, v{vT}")
    a(f"s_and_b32 s{sT0}, s2, 7")
    a(f"s_lshr_b32 s{sT1}, s2, 3")
    if cfg.mapping == "2d":
        a(f"""s_lshr_b32 s{sR}, s{sT0}, 1
        s_lshl_b32 s{sR}, s{sR}, 3
        s_lshr_b32 s{sT2}, s{sT1}, 2
        s_add_u32 s{sR}, s{sR}, s{sT2}
        s_and_b32 s{sJ}, s{sT0}, 1
        s_lshl_b32 s{sJ}, s{sJ}, 2
        s_and_b32 s{sT3}, s{sT1}, 3
        s_add_u32 s{sJ}, s{sJ}, s{sT3}
        s_add_u32 s{sROT}, s{sT2}, s{sT3}""")
    else:
        a(f"""s_lshr_b32 s{sT2}, s{sT1}, 3
        s_lshl_b32 s{sR}, s{sT0}, 2
        s_add_u32 s{sR}, s{sR}, s{sT2}
        s_and_b32 s{sJ}, s{sT1}, 7
        s_add_u32 s{sROT}, s{sT2}, s{sJ}""")
    if not cfg.rot:
        a(f"s_mov_b32 s{sROT}, 0")
    for _ in range(2):
        a(f"s_cmp_ge_u32 s{sROT}, 5\n s_cselect_b32 s{sT2}, 5, 0\n s_sub_u32 s{sROT}, s{sROT}, s{sT2}")
    a(f"s_mov_b32 s{sDC}, s{sROT}")
    for p in range(1, 5):
        a(f"s_add_u32 s{sDC+p}, s{sDC+p-1}, 1\n s_cmp_ge_u32 s{sDC+p}, 5\n s_cselect_b32 s{sDC+p}, 0, s{sDC+p}")
    for s, size in ((S_X, 2048 * 1280), (S_WQ, 640 * 1280), (S_WO, 640 * 1280), (S_W1, 640 * 3072), (S_W2, 1536 * 1280),
                    (S_GATE, 1280), (S_OUT, 2048 * 1280), (S_DBG, 256), (S_WS, WS_SIZE)):
        srd(a, s, size)
    L = vLANE
    T0, T1, T2 = vT, vT + 1, vT + 2
    a(f"v_lshlrev_b32 v{vL16}, 4, v{L}")
    a(f"s_lshl_b32 s{sT2}, s{sROT}, 7")
    a(f"s_and_b32 s{sT3}, s{sJ}, 1\n s_lshl_b32 s{sT3}, s{sT3}, 4")
    for n in range(3):
        a(f"""v_add_u32 v{T0}, s{sT2}, v0
        v_add_u32 v{T0}, {256*n}, v{T0}
        v_subrev_u32 v{T1}, 640, v{T0}
        v_min_u32 v{T0}, v{T0}, v{T1}
        v_mul_u32_u24 v{vKG+n}, 40, v{T0}
        v_add_u32 v{vKG+n}, s{sT3}, v{vKG+n}
        v_lshlrev_b32 v{vKG+3+n}, 1, v{T0}""")
    a(f"""v_lshrrev_b32 v{T0}, 3, v{L}
    v_and_b32 v{T1}, 7, v{L}
    v_xor_b32 v{T1}, v{T1}, v{T0}
    v_mul_u32_u24 v{T0}, 1280, v{T0}
    v_lshl_add_u32 v{vXD}, v{T1}, 4, v{T0}""")
    a(f"s_lshl_b32 s{sXB}, s{sR}, 2\n s_add_u32 s{sXB}, s{sXB}, s{sW}\n s_mul_i32 s{sXB}, s{sXB}, {16*1280}")
    a(f"s_lshl_b32 s{sLW}, s{sW}, 11")
    if cfg.diag == "dbg":
        a(f"s_mov_b32 s{sRT}, s{sSPIN}")
    a(f"s_bitcmp1_b32 s{sJ}, 1")
    a(f"s_cselect_b32 s{S_WKV}, s{S_WV}, s{S_WKV}\n s_cselect_b32 s{S_WKV+1}, s{S_WV+1}, s{S_WKV+1}")
    a(f"s_cmp_lt_u32 s{sJ}, 4\n s_cselect_b32 s{S_WKV+2}, 25600, 0\n s_mov_b32 s{S_WKV+3}, 0x20000")
    for n in range(3):
        b = vSTG + 8 * n
        a(f"buffer_load_dwordx4 {vr(b, 4)}, v{vKG+n}, {sr(S_WKV, 4)}, 0 offen")
        a(f"buffer_load_dwordx2 {vr(b+4, 2)}, v{vKG+n}, {sr(S_WKV, 4)}, 0 offen offset:16")
        a(f"buffer_load_ushort v{b+6}, v{vKG+3+n}, {sr(S_GATE, 4)}, 0 offen")
    for p in range(5):
        a(f"s_lshl_b32 s{sT2}, s{sDC+p}, 8\n s_add_u32 s{sT2}, s{sT2}, s{sXB}")
        a(f"s_add_u32 s{sT3}, s{sT2}, {8*1280}")
        for cc in range(2):
            for b in range(2):
                so = sT2 if b == 0 else sT3
                base = LX + (2 * p + cc) * 8192 + b * 1024 - 128 * cc
                a(f"s_add_u32 m0, s{sLW}, {base}" if base else f"s_mov_b32 m0, s{sLW}")
                a(f"buffer_load_dwordx4 v{vXD}, {sr(S_X, 4)}, s{so} offen" + (" offset:128" if cc else "") + " lds", tag="x")
    for q in range(5):
        a(f"""v_add_u32 v{T0}, {64*q}, v{L}
        v_mul_u32_u24 v{T1}, 6554, v{T0}
        v_lshrrev_b32 v{T1}, 16, v{T1}
        v_mul_u32_u24 v{T2}, 10, v{T1}
        v_sub_u32 v{T2}, v{T0}, v{T2}
        v_lshlrev_b32 v{T2}, 4, v{T2}
        v_mul_u32_u24 v{vSB+q}, 1280, v{T1}
        v_add_u32 v{vSB+q}, v{vSB+q}, v{T2}
        v_and_b32 v{T0}, 0x13, v{T1}
        v_and_b32 v{vSA+q}, 4, v{T1}
        v_lshl_or_b32 v{T0}, v{vSA+q}, 1, v{T0}
        v_and_b32 v{vSA+q}, 8, v{T1}
        v_lshrrev_b32 v{vSA+q}, 1, v{vSA+q}
        v_or_b32 v{T0}, v{T0}, v{vSA+q}
        v_mul_u32_u24 v{T0}, 1280, v{T0}
        v_add_u32 v{vSA+q}, v{T0}, v{T2}""")
    a(f"s_mul_i32 s{sQB}, s{sJ}, 160\n s_mul_i32 s{sT2}, s{sW}, {32*1280}\n s_add_u32 s{sQB}, s{sQB}, s{sT2}")
    a(f"s_mul_i32 s{sLW}, s{sW}, 5120")

    def issue_q(p):
        a(f"s_mul_i32 s{sT2}, s{sDC+p}, {128*1280}\n s_add_u32 s{sT2}, s{sT2}, s{sQB}")
        for q in range(5):
            dma(vSA + q, S_WQ, f"s{sT2}", (sLW, L_Q[p] + 1024 * q), f"q{p}")

    for p in range(3):
        issue_q(p)
    a(f"""s_lshl_b32 s{sT2}, s{sJ}, 2
    s_add_u32 s{sT2}, s{sT2}, s{sW}
    s_lshl_b32 s{sT2}, s{sT2}, 2
    s_lshl_b32 s{sT3}, s{sR}, 7
    s_add_u32 s{sF2}, s{sT3}, {WS_F2}
    s_add_u32 s{sF3}, s{sT3}, {WS_F3}
    s_add_u32 s{sT3}, s{sT2}, s{sF2}
    v_mov_b32 v{T0}, 0
    v_mov_b32 v{T1}, {OOB}
    v_cmp_eq_u32 vcc, 0, v{L}
    v_cndmask_b32 v{vPOLL}, v{T1}, v{T0}, vcc""")
    a(f"buffer_store_dword v{T0}, v{vPOLL}, {sr(S_WS, 4)}, s{sT3} offen sc1")
    a(f"s_lshl_b32 s{sT2}, s{sJ}, 2\n s_add_u32 s{sT3}, s{sT2}, s{sF3}")
    a(f"v_cmp_eq_u32 vcc, 0, v0\n v_cndmask_b32 v{vP0T}, v{T1}, v{T0}, vcc")
    a(f"buffer_store_dword v{T0}, v{vP0T}, {sr(S_WS, 4)}, s{sT3} offen sc1")
    if cfg.warm_code:
        a(f"s_getpc_b64 {sr(sMASK2, 2)}")
        a.raw("L_pc:")
        a(f"""s_lshr_b32 s{sT2}, s2, 3
        s_lshl_b32 s{sT2}, s{sT2}, 11
        v_lshlrev_b32 v{T1}, 7, v{L}
        v_add_u32 v{T1}, s{sT2}, v{T1}
        v_cmp_gt_u32 vcc, L_end-L_pc, v{T1}
        s_and_b64 vcc, vcc, 0xffff
        s_cmp_eq_u32 s{sW}, 0
        s_cselect_b64 vcc, vcc, 0
        s_and_saveexec_b64 {sr(sMASK, 2)}, vcc
        s_cbranch_execz L_nowarm""")
        a.raw(f"    global_load_dword v{vJUNK}, v{T1}, {sr(sMASK2, 2)}")
        a.raw("L_nowarm:")
        a(f"s_mov_b64 exec, -1")
    G, RR, CC, RHO = 250, 251, 252, 253
    SIG = 254
    a(f"""v_lshrrev_b32 v{G}, 4, v{L}
    v_bfe_u32 v{RR}, v{L}, 2, 2
    v_and_b32 v{CC}, 3, v{L}
    v_and_b32 v{RHO}, 15, v{L}
    v_mov_b32 v{vIDX}, 0xdddd
    s_mov_b32 s{sUP}, 0
    s_mov_b32 s{sUP+1}, -1
    s_mov_b32 s{sFB}, 0""")
    a(f"""v_lshrrev_b32 v{T0}, 1, v{G}
    v_lshlrev_b32 v{T0}, 4, v{T0}
    v_and_b32 v{T1}, 1, v{G}
    v_lshl_add_u32 v{T0}, v{T1}, 2, v{T0}
    v_add_u32 v{SIG}, v{T0}, v{RR}
    v_lshlrev_b32 v{T2}, 3, v{CC}
    v_mul_u32_u24 v{T0}, 160, v{SIG}
    v_add_u32 v{T0}, v{T0}, v{T2}
    v_add_u32 v{vRA}, {LR}, v{T0}
    v_add_u32 v{vRA2}, {LR + 40960}, v{T0}
    v_lshl_add_u32 v{vRK}, v{SIG}, 5, v{T2}
    v_add_u32 v{vRK}, {L_KVIMG}, v{vRK}""")
    a(f"""v_and_b32 v{T0}, 0x13, v0
    v_and_b32 v{T1}, 4, v0
    v_lshl_or_b32 v{T0}, v{T1}, 1, v{T0}
    v_and_b32 v{T1}, 8, v0
    v_lshrrev_b32 v{T1}, 1, v{T1}
    v_or_b32 v{T0}, v{T0}, v{T1}
    v_lshrrev_b32 v{T1}, 5, v0
    v_lshlrev_b32 v{T1}, 10, v{T1}
    v_lshl_add_u32 v{vKW}, v{T0}, 5, v{T1}
    v_add_u32 v{vKW}, {L_KVIMG}, v{vKW}
    v_mov_b32 v{vP0}, v{vP0T}""")
    a(f"""v_and_b32 v{T0}, 7, v{RHO}
    v_xor_b32 v{T0}, v{T0}, v{G}
    v_lshlrev_b32 v{T0}, 4, v{T0}
    v_lshl_add_u32 v{T0}, v{RHO}, 7, v{T0}
    v_xor_b32 v{T1}, 64, v{T0}
    s_lshl_b32 s{sT2}, s{sW}, 11
    s_and_b32 s{sT3}, s{sW}, 1
    s_lshl_b32 s{sT3}, s{sT3}, 12
    v_add_u32 v{vXK}, s{sT2}, v{T0}
    v_add_u32 v{vXK+2}, s{sT2}, v{T1}
    v_add_u32 v{vXH}, s{sT3}, v{T0}
    v_add_u32 v{vXH+2}, s{sT3}, v{T1}
    v_add_u32 v{vXK+1}, 40960, v{vXK}
    v_add_u32 v{vXK+3}, 40960, v{vXK+2}
    v_add_u32 v{vXH+1}, 40960, v{vXH}
    v_add_u32 v{vXH+3}, 40960, v{vXH+2}""")

    def xread(dst, base, ks, mt_off):
        c, s = ks >> 1, ks & 1
        hi = 1 if c >= 5 else 0
        return f"ds_read_b128 {dst}, v{base + 2*s + hi} offset:{(c - 5*hi) * 8192 + mt_off}"

    for n in range(3):
        b = vSTG + 8 * n
        if n == 2:
            a(f"s_cmp_lt_u32 s{sW}, 2\n s_cselect_b64 exec, -1, 0")
        a(f"ds_write_b128 v{vKW}, {vr(b, 4)} offset:{8192*n}")
        a(f"ds_write_b128 v{vKW}, {vr(b+4, 4)} offset:{8192*n + 16}")
    a("s_mov_b64 exec, -1")
    for q in range(3):
        a(f"""v_add_u32 v{T0}, {64*q}, v{L}
        v_mul_u32_u24 v{T1}, 2731, v{T0}
        v_lshrrev_b32 v{T1}, 16, v{T1}
        v_mul_u32_u24 v{T2}, 24, v{T1}
        v_sub_u32 v{T2}, v{T0}, v{T2}
        v_and_b32 v{T0}, 6, v{T1}
        v_xor_b32 v{T2}, v{T2}, v{T0}
        v_lshlrev_b32 v{T2}, 4, v{T2}
        v_and_b32 v{T0}, 4, v{T1}
        v_and_b32 v{T1}, 3, v{T1}
        v_lshl_add_u32 v{T1}, v{T0}, 1, v{T1}
        v_mul_u32_u24 v{T1}, 3072, v{T1}
        v_add_u32 v{vW1D+q}, v{T1}, v{T2}""")
    a(f"""s_lshr_b32 s{sT2}, s{sW}, 1
    s_lshl_b32 s{sT2}, s{sT2}, 4
    s_and_b32 s{sT3}, s{sW}, 1
    s_lshl_b32 s{sT3}, s{sT3}, 2
    s_add_u32 s{sT2}, s{sT2}, s{sT3}
    s_mul_i32 s{sT2}, s{sT2}, 3072
    s_mul_i32 s{sW1B}, s{sJ}, 384
    s_add_u32 s{sW1B}, s{sW1B}, s{sT2}""")
    a(f"""v_mul_u32_u24 v{T0}, 384, v{SIG}
    v_lshl_add_u32 v{T0}, v{CC}, 3, v{T0}
    v_add_u32 v{T0}, {L_W1}, v{T0}
    v_bfe_u32 v{T1}, v{SIG}, 1, 2
    s_lshr_b32 s{sT2}, s{sW}, 1
    s_mul_i32 s{sT2}, s{sT2}, 6""")
    for i in range(6):
        a(f"""s_add_u32 s{sT3}, s{sT2}, {i}
        s_and_b32 s{sT0}, s{sT3}, 3
        s_lshr_b32 s{sT3}, s{sT3}, 2
        s_lshl_b32 s{sT3}, s{sT3}, 7
        v_xor_b32 v{T2}, s{sT0}, v{T1}
        v_lshl_add_u32 v{T2}, v{T2}, 5, v{T0}
        v_add_u32 v{vR1+i}, s{sT3}, v{T2}""")
    a(f"""s_and_b32 s{sT0}, s{sW}, 1
    s_and_b32 s{sT1}, s{sJ}, 1
    s_cmp_ge_u32 s{sJ}, 2
    s_cbranch_scc1 L_vrole""")
    a(f"""s_lshl_b32 s{sT2}, s{sT1}, 1
    v_add_u32 v{T0}, s{sT2}, v{G}
    s_lshl_b32 s{sT3}, s{sT0}, 4
    v_add_u32 v{T1}, s{sT3}, v{RHO}
    v_lshrrev_b32 v{T2}, 1, v{T0}
    v_lshlrev_b32 v{T2}, 9, v{T2}
    v_lshl_add_u32 v{T2}, v{T1}, 4, v{T2}
    v_and_b32 v{vKVST}, 1, v{T0}
    v_lshl_add_u32 v{T2}, v{vKVST}, 3, v{T2}
    v_lshlrev_b32 v{T1}, 3, v{T1}
    v_add_u32 v{T1}, 2560, v{T1}
    v_cmp_eq_u32 vcc, 4, v{T0}
    v_cndmask_b32 v{vKVST}, v{T2}, v{T1}, vcc
    v_mov_b32 v{T2}, {OOB}
    v_cmp_eq_u32 vcc, 3, v{G}
    v_cndmask_b32 v{vKVST}, v{vKVST}, v{T2}, vcc
    v_cmp_gt_u32 vcc, s{sT1}, v{G}
    v_cndmask_b32 v{vKVST}, v{vKVST}, v{T2}, vcc
    s_mov_b64 {sr(sMASK, 2)}, 0
    s_mov_b64 {sr(sMASK2, 2)}, 0
    s_branch L_roledone""")
    a.raw("L_vrole:")
    a(f"""s_lshl_b32 s{sT2}, s{sT1}, 3
    v_add_u32 v{T0}, s{sT2}, v{RHO}
    v_lshrrev_b32 v{T1}, 2, v{T0}
    v_lshlrev_b32 v{T1}, 3, v{T1}
    v_and_b32 v{T2}, 3, v{T0}
    v_add_u32 v{T1}, v{T1}, v{T2}
    v_cmp_le_u32 vcc, 12, v{T0}
    v_cndmask_b32 v{T1}, v{T1}, v{T0}, vcc
    v_subrev_u32 v{T2}, 12, v{T0}
    v_cmp_le_u32 vcc, 16, v{T0}
    v_cndmask_b32 v{T1}, v{T1}, v{T2}, vcc
    v_cmp_eq_u32 {sr(sMASK2, 2)}, 20, v{T0}
    v_mov_b32 v{T2}, 20
    v_cndmask_b32 v{T1}, v{T1}, v{T2}, {sr(sMASK2, 2)}
    v_lshlrev_b32 v{T1}, 4, v{T1}
    v_lshrrev_b32 v{T2}, 1, v{G}
    s_lshl_b32 s{sT3}, s{sT0}, 1
    v_add_u32 v{T2}, s{sT3}, v{T2}
    v_mul_u32_u24 v{T2}, 384, v{T2}
    v_add_u32 v{T1}, v{T1}, v{T2}
    v_and_b32 v{T2}, 1, v{G}
    v_lshl_add_u32 v{T1}, v{T2}, 3, v{T1}
    v_add_u32 v{vKVST}, 1024, v{T1}
    v_mov_b32 v{T2}, {OOB}
    s_lshl_b32 s{sT3}, s{sT1}, 2
    v_cmp_gt_u32 vcc, s{sT3}, v{RHO}
    v_cndmask_b32 v{vKVST}, v{vKVST}, v{T2}, vcc
    s_add_u32 s{sT3}, s{sT1}, 12
    v_cmp_le_u32 vcc, s{sT3}, v{RHO}
    v_cndmask_b32 v{vKVST}, v{vKVST}, v{T2}, vcc
    s_cmp_lt_u32 s{sJ}, 4
    s_cselect_b64 vcc, 0, -1
    v_cndmask_b32 v{vKVST}, v{vKVST}, v{T2}, vcc
    s_mov_b64 {sr(sMASK, 2)}, -1""")
    a.raw("L_roledone:")
    a("s_nop 1")
    a(f"""v_and_b32 v{T0}, 31, v{L}
    v_lshrrev_b32 v{T1}, 5, v{L}
    v_mul_u32_u24 v{T1}, 384, v{T1}
    v_lshl_add_u32 v{T1}, v{T0}, 4, v{T1}
    v_mov_b32 v{T2}, {OOB}
    v_cmp_gt_u32 vcc, 21, v{T0}
    v_cndmask_b32 v{vVA}, v{T2}, v{T1}, vcc
    v_lshlrev_b32 v{T1}, 3, v{L}
    v_cmp_gt_u32 vcc, 32, v{L}
    v_cndmask_b32 v{vK2A}, v{T2}, v{T1}, vcc""")
    a(f"""s_mul_i32 s{sT2}, s{sW}, {16*160}
    s_add_u32 s{sT2}, s{sT2}, {L_QIMG}
    v_mul_u32_u24 v{vQW}, 160, v{RHO}
    v_lshl_add_u32 v{vQW}, v{G}, 3, v{vQW}
    v_add_u32 v{vQW}, s{sT2}, v{vQW}
    s_and_b32 s{sT2}, s{sW}, 1
    s_mul_i32 s{sT2}, s{sT2}, {32*160}
    s_add_u32 s{sT2}, s{sT2}, {L_QIMG}
    v_mul_u32_u24 v{vQR}, 160, v{T0}
    v_add_u32 v{vQR}, s{sT2}, v{vQR}""")
    for mu in range(4):
        a(f"s_xor_b32 s{sT2}, s{sW}, {mu}\n s_lshl_b32 s{sT2}, s{sT2}, 10\n v_add_u32 v{vHA+mu}, s{sT2}, v{vL16}")
    a(f"""v_lshl_add_u32 v{T1}, v{G}, 2, v{RR}
    v_mul_u32_u24 v{T1}, 160, v{T1}
    v_lshl_add_u32 v{T1}, v{CC}, 3, v{T1}
    s_mul_i32 s{sRING}, s{sW}, {L_RING}
    v_add_u32 v{vRB}, s{sRING}, v{T1}
    v_mul_u32_u24 v{T1}, 1280, v{RHO}
    v_lshl_add_u32 v{vOUT}, v{G}, 3, v{T1}""")
    a(f"""s_lshr_b32 s{sT2}, s{sW}, 1
    s_mul_i32 s{sT2}, s{sT2}, 5
    s_mul_i32 s{sT3}, s{sJ}, 10
    s_add_u32 s{sT2}, s{sT2}, s{sT3}
    s_and_b32 s{sT3}, s{sW}, 1
    s_lshl_b32 s{sT3}, s{sT3}, 11
    v_bfe_u32 v{T1}, v{L}, 4, 1
    v_lshlrev_b32 v{T1}, 10, v{T1}
    v_lshl_add_u32 v{T1}, v{RHO}, 4, v{T1}
    v_add_u32 v{T1}, s{sT3}, v{T1}""")
    for i, (lo, up) in enumerate(((0, 2), (1, 1), (3, 4))):
        a(f"""v_mov_b32 v{T0}, {lo}
        v_mov_b32 v{T2}, {up}
        v_cndmask_b32 v{T0}, v{T0}, v{T2}, {sr(sUP, 2)}
        v_add_u32 v{T0}, s{sT2}, v{T0}
        v_lshrrev_b32 v{T2}, 2, v{T0}
        v_lshlrev_b32 v{T2}, 12, v{T2}
        v_and_b32 v{T0}, 3, v{T0}
        v_lshl_add_u32 v{T2}, v{T0}, 8, v{T2}
        v_add_u32 v{vOST+i}, v{T2}, v{T1}""")
    a(f"v_mov_b32 v{T2}, {OOB}\n v_cndmask_b32 v{vOST+1}, v{vOST+1}, v{T2}, {sr(sUP, 2)}")
    a(f"""s_mul_i32 s{sHB}, s{sR}, {48*4096}
    s_add_u32 s{sHB}, s{sHB}, {WS_H}
    s_mul_i32 s{sOB}, s{sR}, {20*4096}
    s_add_u32 s{sOB}, s{sOB}, {WS_O}
    s_mul_i32 s{sT2}, s{sJ}, 160
    s_mul_i32 s{sW2B}, s{sW}, {384*1280}
    s_add_u32 s{sW2B}, s{sW2B}, s{sT2}
    s_mul_i32 s{sWOB}, s{sW}, {160*1280}
    s_add_u32 s{sWOB}, s{sWOB}, s{sT2}
    s_lshr_b32 s{sT2}, s{sW}, 1
    s_mul_i32 s{sKVLO}, s{sT2}, {32*KVREC}
    s_add_u32 s{sKVHI}, s{sKVLO}, {32*KVREC}""")
    if cfg.kvrot:
        a(f"s_lshr_b32 s{sT2}, s2, 3\n s_mul_i32 s{sT2}, s{sT2}, {KVREC}\n s_add_u32 s{sKV}, s{sKVLO}, s{sT2}")
    else:
        a(f"s_mov_b32 s{sKV}, s{sKVLO}")
    for i in range(64):
        a(f"v_accvgpr_write_b32 a{aO+i}, 0")

    a.wait(vm_tag="x", lds_all=True)
    a("s_barrier")
    stamp()
    accT, accN = vKVACC, vKVACC + 4
    LOOK = 4

    def kv_reads(ks):
        a(xread(ar(aXF + 4 * ks, 4), vXK, ks, 0))
        a(f"ds_read_b64_tr_b16 {ar(aKW + 4*ks, 2)}, v{vRK} offset:{1024*ks}")
        a(f"ds_read_b64_tr_b16 {ar(aKW + 4*ks + 2, 2)}, v{vRK} offset:{1024*ks + 256}")

    for ks in range(LOOK):
        kv_reads(ks)
    for ks in range(20):
        if ks + LOOK < 20:
            kv_reads(ks + LOOK)
        xf, wf = ar(aXF + 4 * ks, 4), ar(aKW + 4 * ks, 4)
        a(f"v_mfma_f32_16x16x32_bf16 {vr(accT, 4)}, {wf}, {xf}, {vr(accT, 4) if ks else 0}")
        a(f"v_mfma_f32_16x16x32_bf16 {vr(accN, 4)}, {xf}, {wf}, {vr(accN, 4) if ks else 0}")
    a(f"s_lshl_b32 s{sT2}, s{sR}, 1\n s_lshr_b32 s{sT3}, s{sW}, 1\n s_add_u32 s{sT2}, s{sT2}, s{sT3}\n s_mul_i32 s{sT2}, s{sT2}, {KVREC}")
    a(f"""v_mov_b32 v{vZ}, v{accT}
    v_cvt_pk_bf16_f32 v{accT}, v{accT}, v{accT+1}
    v_cvt_pk_bf16_f32 v{accT+1}, v{accT+2}, v{accT+3}
    v_cvt_pk_bf16_f32 v{accN}, v{accN}, v{accN+1}
    v_cvt_pk_bf16_f32 v{accN+1}, v{accN+2}, v{accN+3}
    v_mov_b32 v{T0}, 0x3f803f80
    v_cndmask_b32 v{accN}, v{accN}, v{T0}, {sr(sMASK2, 2)}
    v_cndmask_b32 v{accN+1}, v{accN+1}, v{T0}, {sr(sMASK2, 2)}
    v_cndmask_b32 v{accT}, v{accT}, v{accN}, {sr(sMASK, 2)}
    v_cndmask_b32 v{accT+1}, v{accT+1}, v{accN+1}, {sr(sMASK, 2)}""")
    a(f"buffer_store_dwordx2 {vr(accT, 2)}, v{vKVST}, {sr(S_WS, 4)}, s{sT2} offen sc1", tag="kvst")
    a(f"""v_mul_f32 v{vZ}, {hex(f2u(-math.log2(math.e)))}, v{vZ}
    v_exp_f32 v{vZ}, v{vZ}
    v_add_f32 v{vZ}, 1.0, v{vZ}
    v_rcp_f32 v{vZ}, v{vZ}""")

    def w1_issue(i):
        a(f"s_mul_i32 s{sT2}, s{sDC + (i >> 2)}, {128*3072}\n s_add_u32 s{sT2}, s{sT2}, s{sW1B}")
        if i & 3:
            a(f"s_add_u32 s{sT2}, s{sT2}, {(i & 3) * 32 * 3072}")
        for q in range(3):
            dma(vW1D + q, S_W1, f"s{sT2}", (sLW2, L_W1 + (i % 5) * 12288 + q * 1024), f"w1_{i}")

    sLW2 = sT1
    a(f"s_mul_i32 s{sLW2}, s{sW}, 3072")

    def q_reads(ks):
        p, kk = ks >> 2, ks & 3
        off = L_Q[p] - LR + kk * 5120
        base = vRA
        if off >= 40960:
            base, off = vRA2, off - 40960
        out = []
        for t in range(5):
            d = vWQF + 20 * (ks & 1) + 4 * t
            out.append(f"ds_read_b64_tr_b16 {vr(d, 2)}, v{base} offset:{off + 32*t}")
            out.append(f"ds_read_b64_tr_b16 {vr(d+2, 2)}, v{base} offset:{off + 32*t + 1280}")
        return out

    def q_mfma(ks):
        return [f"v_mfma_f32_16x16x32_bf16 {vr(vQACC + 4*t, 4)}, {vr(vWQF + 20*(ks&1) + 4*t, 4)}, {ar(aXF + 4*ks, 4)}, "
                f"{vr(vQACC + 4*t, 4) if ks else 0}" for t in range(5)]

    for p in range(5):
        if p == 3:
            a.wait_vm("kvst")
        a.wait(vm_tag=f"q{p}", lds_all=True)
        a("s_barrier")
        if p == 0:
            issue_q(3)
        elif p == 1:
            issue_q(4)
        elif p == 2:
            w1_issue(0)
        elif p == 3:
            a(f"""s_and_b32 s{sT2}, s2, 15
            s_lshl_b32 s{sT2}, s{sT2}, 4
            v_mov_b32 v{T0}, 1""")
            a(f"buffer_atomic_add v{T0}, v{vP0}, {sr(S_DBG, 4)}, s{sT2} offen sc1")
            w1_issue(1)
            w1_issue(2)
        else:
            w1_issue(3)
            w1_issue(4)
        for r_ in q_reads(4 * p):
            a(r_)
        if p:
            for m in q_mfma(4 * p - 1):
                a(m)
        for kk in range(3):
            ks = 4 * p + kk
            rd, mm = q_reads(ks + 1), q_mfma(ks)
            for t in range(5):
                a(mm[t])
                a(rd[2 * t])
                a(rd[2 * t + 1])
    for m in q_mfma(19):
        a(m)
    stamp()

    def h_reads(i):
        out = []
        b = i & 1
        for mt in range(2):
            out.append(xread(vr(vXF + 8 * b + 4 * mt, 4), vXH, i, 2048 * mt))
        for t in range(6):
            d = vW1F + 24 * b + 4 * t
            off = (i % 5) * 12288
            out.append(f"ds_read_b64_tr_b16 {vr(d, 2)}, v{vR1+t} offset:{off}")
            out.append(f"ds_read_b64_tr_b16 {vr(d+2, 2)}, v{vR1+t} offset:{off + 8*384}")
        return out

    def h_mfma(i):
        b = i & 1
        out = []
        for t in range(6):
            for mt in range(2):
                acc = vr(vHACC + 4 * (6 * mt + t), 4)
                out.append(f"v_mfma_f32_16x16x32_bf16 {acc}, {vr(vW1F + 24*b + 4*t, 4)}, {vr(vXF + 8*b + 4*mt, 4)}, {acc if i else 0}")
        return out

    def kv_load(n):
        b = vKV + 14 * (n % 3)
        out = [f"buffer_load_dwordx4 {vr(b, 4)}, v{vL16}, {sr(S_WS, 4)}, s{sKV} offen sc1",
               f"buffer_load_dwordx2 {vr(b+12, 2)}, v{vK2A}, {sr(S_WS, 4)}, s{sKV} offen offset:2560 sc1",
               f"buffer_load_dwordx4 {vr(b+4, 4)}, v{vVA}, {sr(S_WS, 4)}, s{sKV} offen offset:1024 sc1",
               f"buffer_load_dwordx4 {vr(b+8, 4)}, v{vVA}, {sr(S_WS, 4)}, s{sKV} offen offset:1792 sc1",
               f"s_add_u32 s{sKV}, s{sKV}, {KVREC}",
               f"s_cmp_ge_u32 s{sKV}, s{sKVHI}",
               f"s_cselect_b32 s{sKV}, s{sKVLO}, s{sKV}"]
        return out

    def spin(label, vaddr, srdreg, soff, expect):
        a(f"v_cmp_gt_u32 vcc, {expect}, v{vPV}")
        a(f"s_cbranch_vccz {label}_ok")
        a(f"s_mov_b32 s{sSPIN}, 0x40000")
        a.raw(f"{label}_spin:")
        a.raw(f"    s_sleep 1")
        a.raw(f"    buffer_load_dword v{vPV}, v{vaddr}, {sr(srdreg, 4)}, {soff} offen sc1")
        a.raw(f"    s_waitcnt vmcnt(0)")
        a.raw(f"    v_cmp_gt_u32 vcc, {expect}, v{vPV}")
        a.raw(f"    s_nop 1")
        a.raw(f"    s_cbranch_vccz {label}_ok")
        a.raw(f"    s_sub_u32 s{sSPIN}, s{sSPIN}, 1")
        a.raw(f"    s_cmp_lg_u32 s{sSPIN}, 0")
        a.raw(f"    s_cbranch_scc1 {label}_spin")
        a.raw(f"{label}_ok:")

    vPV, vPA = 248, 249
    a.wait(vm_tag="w1_0", lds_all=True)
    a("s_barrier")
    for r_ in h_reads(0):
        a(r_)
    a(f"s_mov_b32 s{sT2}, {hex(f2u(QSCALE))}")
    for t in range(5):
        q = vQACC + 4 * t
        for i in range(4):
            a(f"v_mul_f32 v{q+i}, s{sT2}, v{q+i}")
        a(f"v_cvt_pk_bf16_f32 v{q}, v{q}, v{q+1}\n v_cvt_pk_bf16_f32 v{q+1}, v{q+2}, v{q+3}")
        a(f"ds_write_b64 v{vQW}, {vr(q, 2)} offset:{32*t}")
    a(f"""s_lshl_b32 s{sT2}, s{sW}, 8
    s_add_u32 s{sT2}, s{sT2}, {L_G}
    v_lshlrev_b32 v{T0}, 2, v{L}
    v_add_u32 v{T0}, s{sT2}, v{T0}""")
    a(f"ds_write_b32 v{T0}, v{vZ}")
    for i in range(20):
        if i == 16:
            a.wait_regs(f"v{vPV}")
            a(f"s_cmp_lg_u32 s{sW}, 0\n s_cbranch_scc1 L_f1_ok")
            spin("L_f1", vPA, S_DBG, 0, 16)
        a.wait(vm_tag=f"w1_{i+1}" if i < 19 else None, lds_all=True)
        a("s_barrier")
        if i + 5 < 20:
            w1_issue(i + 5)
        if i == 0:
            a(f"s_lshr_b32 s{sT2}, s{sW}, 1\n s_mul_i32 s{sT2}, s{sT2}, 80")
            a(f"v_lshrrev_b32 v{T0}, 5, v{L}\n v_lshl_add_u32 v{T0}, v{T0}, 4, v{vQR}")
            a(f"v_add_u32 v{T1}, s{sT2}, v{T0}\n v_subrev_u32 v{T0}, s{sT2}, v{T0}")
            a(f"v_add_u32 v{T2}, s{sT2}, v{vQR}\n v_subrev_u32 v{vQR}, s{sT2}, v{vQR}")
            for tau in range(4):
                b1, b2 = (T1, T2) if tau < 2 else (T0, vQR)
                o = 40 * tau
                a(f"ds_read2_b64 {vr(vQ + 6*tau, 4)}, v{b1} offset0:{o//8} offset1:{o//8 + 1}")
                a(f"ds_read_b64 {vr(vQ + 6*tau + 4, 2)}, v{b2} offset:{o + 32}")
            a(f"""s_and_b32 s{sT2}, s{sW}, 1
            s_lshl_b32 s{sT2}, s{sT2}, 9
            s_add_u32 s{sT2}, s{sT2}, {L_G + 192}
            v_lshlrev_b32 v{vPA}, 2, v{RHO}
            v_add_u32 v{vPA}, s{sT2}, v{vPA}
            v_bfe_u32 v{vPV}, v{L}, 4, 1
            v_lshl_add_u32 v{vPV}, v{vPV}, 8, v{vPA}""")
            a(f"ds_read_b32 v{vOM0}, v{vPA}\n ds_read_b32 v{vOM1}, v{vPA} offset:256\n ds_read_b32 v{vGO}, v{vPV}")
        if i == 1:
            a(f"v_sub_f32 v{vOM0}, 1.0, v{vOM0}\n v_sub_f32 v{vOM1}, 1.0, v{vOM1}")
        if i == 13:
            a(f"""v_and_b32 v{vPA}, 15, v{L}
            v_lshlrev_b32 v{vPA}, 4, v{vPA}
            s_cmp_eq_u32 s{sW}, 0
            s_cselect_b32 s{sT2}, 0, {OOB}
            v_or_b32 v{vPA}, s{sT2}, v{vPA}""")
            a(f"buffer_load_dword v{vPV}, v{vPA}, {sr(S_DBG, 4)}, 0 offen sc1")
        if i == 16:
            for x_ in kv_load(0) + kv_load(1):
                a(x_)
        rd = h_reads(i + 1) if i < 19 else []
        mm = h_mfma(i)
        k = 0
        for n, m in enumerate(mm):
            a(m)
            take = 2 if n < 2 else 1
            for _ in range(take):
                if k < len(rd):
                    a(rd[k]); k += 1
    stamp()
    a(f"""s_mul_i32 s{sT2}, s{sJ}, 6
    s_lshr_b32 s{sT3}, s{sW}, 1
    s_mul_i32 s{sT3}, s{sT3}, 3
    s_add_u32 s{sT2}, s{sT2}, s{sT3}
    s_lshl_b32 s{sT2}, s{sT2}, 12
    s_and_b32 s{sT3}, s{sW}, 1
    s_lshl_b32 s{sT3}, s{sT3}, 11
    s_add_u32 s{sT2}, s{sT2}, s{sT3}
    s_add_u32 s{sT2}, s{sT2}, s{sHB}""")
    for u in range(3):
        for mt in range(2):
            om = vOM0 if mt == 0 else vOM1
            d = vW1F + 4 * (2 * u + mt)
            for tt in range(2):
                acc = vHACC + 4 * (6 * mt + 2 * u + tt)
                for h in range(2):
                    a(f"v_pk_mul_f32 {vr(acc + 2*h, 2)}, {vr(acc + 2*h, 2)}, {vr(om, 2)} op_sel_hi:[1,0]")
                for h in range(2):
                    a(f"v_cvt_pk_bf16_f32 v{d + 2*tt + h}, v{acc + 2*h}, v{acc + 2*h + 1}")
            for i in range(4):
                a(f"v_pk_max_i16 v{d+i}, v{d+i}, 0")
            a(f"buffer_store_dwordx4 {vr(d, 4)}, v{vL16}, {sr(S_WS, 4)}, s{sT2} offen offset:{1024*mt} sc1", tag="hst")
        if u < 2:
            a(f"s_add_u32 s{sT2}, s{sT2}, 4096")
    if cfg.stop == "A":
        a.wait_all()
        a("s_branch L_end")

    def ring_issue(n):
        out = []
        if n < 12:
            out.append([f"s_add_u32 s{sT2}, s{sW2B}, {n*32*1280}"])
            vs, sd = vSB, S_W2
        else:
            out.append([f"s_add_u32 s{sT2}, s{sWOB}, {(n-12)*32*1280}"])
            vs, sd = vSA, S_WO
        for q in range(5):
            out.append([f"s_add_u32 m0, s{sRING}, {(n % NSLOT)*5120 + q*1024}"])
            out.append([(f"buffer_load_dwordx4 v{vs+q}, {sr(sd, 4)}, s{sT2} offen lds", f"ring{n}")])
        return out

    def emit_item(x):
        if callable(x):
            x()
        elif isinstance(x, tuple):
            a(x[0], tag=x[1])
        else:
            a(x)

    NT = 128
    side = {}

    def add_side(tile, groups):
        side.setdefault(tile, []).extend(groups)

    for n in range(2, 32):
        ld = kv_load(n)
        add_side(4 * (n - 2) + 1, [[ld[0]], [ld[1]], [ld[2]], [ld[3]]])
        add_side(4 * (n - 2) + 2, [[ld[4]], [ld[5], ld[6]]])
    groups = []
    for n in range(NSLOT):
        groups += ring_issue(n)
    per = 4
    t_ = 3
    while groups:
        add_side(t_, groups[:per]); groups = groups[per:]
        t_ += 4 if (t_ % 4) == 3 else 3
        if t_ % 4 == 3 and False:
            pass

    def f2_flag():
        a.wait_vm("hst")
        a(f"s_lshl_b32 s{sT3}, s{sJ}, 2\n s_add_u32 s{sT3}, s{sT3}, s{sW}\n s_lshl_b32 s{sT3}, s{sT3}, 2\n s_add_u32 s{sT3}, s{sT3}, s{sF2}")
        a(f"v_mov_b32 v{T0}, 1")
        a(f"buffer_store_dword v{T0}, v{vPOLL}, {sr(S_WS, 4)}, s{sT3} offen sc1")

    def f2_poll():
        a(f"v_and_b32 v{vPA}, 7, v{L}\n v_lshlrev_b32 v{vPA}, 2, v{vPA}\n s_lshl_b32 s{sT3}, s{sW}, 5\n s_add_u32 s{sT0}, s{sT3}, s{sF2}")
        a(f"buffer_load_dword v{vPV}, v{vPA}, {sr(S_WS, 4)}, s{sT0} offen sc1")

    def f2_check():
        a.wait_regs(f"v{vPV}")
        spin("L_f2", vPA, S_WS, f"s{sT0}", 1)
        a(f"s_mul_i32 s{sT0}, s{sW}, {12*4096}\n s_add_u32 s{sT0}, s{sT0}, s{sHB}")

    add_side(8, [[f2_flag]])
    add_side(4 * 9, [[f2_poll]])
    add_side(4 * 11, [[f2_check]])
    hl = []
    for ks in range(12):
        for mu in range(4):
            hl.append([f"buffer_load_dwordx4 {ar(aH + 16*ks + 4*mu, 4)}, v{vHA+mu}, {sr(S_WS, 4)}, s{sT0} offen sc1"])
        hl.append([f"s_add_u32 s{sT0}, s{sT0}, 4096"])
    t_ = 4 * 11 + 3
    while hl:
        add_side(t_, hl[:4]); hl = hl[4:]
        t_ += 4

    def qk(i):
        n, tau = i >> 2, i & 3
        kb, s = vKV + 14 * (n % 3), vS + 16 * (i % 3)
        return [f"v_mfma_f32_32x32x16_bf16 {vr(s, 16)}, {vr(kb, 4)}, {vr(vQ + 6*tau, 4)}, 0",
                f"v_mfma_f32_32x32x8_bf16 {vr(s, 16)}, {vr(kb+12, 2)}, {vr(vQ + 6*tau + 4, 2)}, {vr(s, 16)}"]

    def pv(i):
        n, tau = i >> 2, i & 3
        kb, s = vKV + 14 * (n % 3), vS + 16 * (i % 3)
        o = ar(aO + 16 * tau, 16)
        return [f"v_smfmac_f32_32x32x32_bf16 {o}, {vr(kb+4, 4)}, {vr(s, 8)}, v{vIDX}",
                f"v_smfmac_f32_32x32x32_bf16 {o}, {vr(kb+8, 4)}, {vr(s+8, 8)}, v{vIDX}"]

    stamp()
    for m in qk(0):
        a(m)
    for i in range(NT):
        ms = (qk(i + 1) if i + 1 < NT else [None, None]) + (pv(i - 1) if i else [None, None])
        s = vS + 16 * (i % 3)
        grp = list(side.get(i, []))
        nslots = sum(m is not None for m in ms)
        for k, m in enumerate(ms):
            if m is not None:
                a(m)
                take = -(-len(grp) // nslots)
                nslots -= 1
                for g_ in grp[:take]:
                    for x_ in g_:
                        emit_item(x_)
                grp = grp[take:]
            for e in range(4):
                a(f"v_exp_f32 v{s + 4*k + e}, v{s + 4*k + e}")
    for m in pv(NT - 1):
        a(m)
    stamp()

    a.raw("L_combine:")
    a(f"s_mul_i32 s{sT2}, s{sW}, 6144\n s_add_u32 s{sT2}, s{sT2}, {L_SCR}\n v_add_u32 v{T0}, s{sT2}, v{vL16}")
    a(f"s_lshl_b32 s{sT2}, s{sW}, 10\n s_add_u32 s{sT2}, s{sT2}, {L_LSC}\n v_add_u32 v{T1}, s{sT2}, v{vL16}")
    a(f"s_xor_b32 s{sT3}, s{sW}, 2\n s_mul_i32 s{sT3}, s{sT3}, 6144\n s_add_u32 s{sT3}, s{sT3}, {L_SCR}\n v_add_u32 v{T2}, s{sT3}, v{vL16}")
    vLC = vTMP + 60
    a(f"""v_and_b32 v{vLC}, 31, v{L}
    v_lshlrev_b32 v{vLC}, 4, v{vLC}
    v_lshrrev_b32 v{vLC+1}, 5, v{L}
    v_lshl_add_u32 v{vLC}, v{vLC+1}, 10, v{vLC}
    v_add_u32 v{vLC}, {L_LSC + 512}, v{vLC}""")
    for tau in range(2, 4):
        for q in range(3):
            a(f"ds_write_b128 v{T0}, {ar(aO + 16*tau + 4*q, 4)} offset:{((tau-2)*3 + q) * 1024}")
    vLL = vTMP + 48
    for tau in range(4):
        a(f"v_accvgpr_read_b32 v{vLL+tau}, a{aO + 16*tau + 8}")
    a(f"ds_write_b128 v{T1}, {vr(vLL, 4)}")
    vOW, vOP = vTMP, vTMP + 24
    for tau in range(2):
        for i in range(12):
            a(f"v_accvgpr_read_b32 v{vOW + 12*tau + i}, a{aO + 16*tau + i}")
    a.wait(lds_all=True)
    a("s_barrier")
    a(f"ds_read_b128 {vr(vLL, 4)}, v{vLC}\n ds_read_b128 {vr(vLL+4, 4)}, v{vLC} offset:2048")
    for q in range(6):
        a(f"ds_read_b128 {vr(vOP + 4*q, 4)}, v{T2} offset:{1024*q}")
    for i in range(4):
        a(f"v_add_f32 v{vLL+i}, v{vLL+i}, v{vLL + 4 + (i ^ 2)}")
    a(f"""s_mov_b32 s{sT3}, {hex(f2u(2.0**60))}
    v_min3_f32 v{vLL+4}, v{vLL}, v{vLL+1}, v{vLL+2}
    v_min_f32 v{vLL+4}, v{vLL+4}, v{vLL+3}
    v_add_f32 v{vLL}, v{vLL}, v{vLL+1}
    v_add_f32 v{vLL+2}, v{vLL+2}, v{vLL+3}
    v_add_f32 v{vLL}, v{vLL}, v{vLL+2}
    v_cmp_nle_f32 vcc, {hex(f2u(2.0**-60))}, v{vLL+4}
    v_cmp_nge_f32 {sr(sMASK, 2)}, s{sT3}, v{vLL}""")
    a(f"s_or_b64 vcc, vcc, {sr(sMASK, 2)}")
    a(f"s_cmp_eq_u32 s{sFB}, 0\n s_cselect_b64 vcc, vcc, 0")
    a("s_cbranch_vccnz L_fallback")
    for i in range(24):
        a(f"v_add_f32 v{vOW+i}, v{vOW+i}, v{vOP+i}")
    for tau in range(2):
        a(f"v_mov_b32 v{vLL+tau}, v{vOW + 12*tau + 8}")
    for tau in range(2):
        a(f"v_permlane32_swap_b32 v{vOW + 12*tau + 8}, v{vLL+tau}")
    for tau in range(2):
        a(f"v_rcp_f32 v{vLL+2*tau+4}, v{vLL+tau}")
    for tau in range(2):
        a(f"v_mul_f32 v{vLL+2*tau+4}, v{vGO}, v{vLL+2*tau+4}")
    vP = vOP
    for tau in range(2):
        for i in range(6):
            x_ = vOW + 12 * tau + 2 * i
            a(f"v_pk_mul_f32 {vr(x_, 2)}, {vr(x_, 2)}, {vr(vLL + 2*tau + 4, 2)} op_sel_hi:[1,0]")
        for i in range(6):
            x_ = vOW + 12 * tau + 2 * i
            a(f"v_cvt_pk_bf16_f32 v{vP + 6*tau + i}, v{x_}, v{x_+1}")
    a(f"v_permlane32_swap_b32 v{vP+2}, v{vP+6}\n v_permlane32_swap_b32 v{vP+3}, v{vP+7}")
    a(f"v_cndmask_b32 v{vP+10}, v{vP+10}, v{vP+6}, {sr(sUP, 2)}\n v_cndmask_b32 v{vP+11}, v{vP+11}, v{vP+7}, {sr(sUP, 2)}")
    for i in range(3):
        a(f"buffer_store_dwordx4 {vr(vP + 4*i, 4)}, v{vOST+i}, {sr(S_WS, 4)}, s{sOB} offen sc1", tag="ost")
    stamp()

    a(f"v_subrev_u32 v{vRA}, {LR}, v{vRA}\n v_add_u32 v{vRA}, s{sRING}, v{vRA}")

    def c_reads(n):
        out = []
        for t in range(5):
            d = vCW + 20 * (n & 1) + 4 * t
            off = (n % NSLOT) * 5120 + 32 * t
            if n < 12:
                out += [f"ds_read_b64_tr_b16 {vr(d, 2)}, v{vRB} offset:{off}", f"ds_read_b64_tr_b16 {vr(d+2, 2)}, v{vRB} offset:{off + 16*160}"]
            else:
                out += [f"ds_read_b64_tr_b16 {vr(d, 2)}, v{vRA} offset:{off}", f"ds_read_b64_tr_b16 {vr(d+2, 2)}, v{vRA} offset:{off + 8*160}"]
        return out

    def c_mfma(n):
        out = []
        for mu in range(4):
            for t in range(5):
                acc = vr(vCACC + 4 * (5 * mu + t), 4)
                act = ar(aH + 16 * (n if n < 12 else n - 12) + 4 * mu, 4)
                out.append(f"v_mfma_f32_16x16x32_bf16 {acc}, {vr(vCW + 20*(n&1) + 4*t, 4)}, {act}, {acc if n else 0}")
        return out

    a.wait_vm("ring0")
    for r_ in c_reads(0):
        a(r_)
    for n in range(17):
        extra = []
        if n == cfg.f3_wait_step:
            a.wait_vm("ost")
            a("s_barrier")
            a(f"s_lshl_b32 s{sT3}, s{sJ}, 2\n s_add_u32 s{sT3}, s{sT3}, s{sF3}")
            a(f"v_mov_b32 v{T0}, 1")
            a(f"buffer_store_dword v{T0}, v{vP0}, {sr(S_WS, 4)}, s{sT3} offen sc1")
        if n == cfg.f3_poll_step:
            a(f"buffer_load_dword v{vPV}, v{vPA}, {sr(S_WS, 4)}, s{sF3} offen sc1")
        if n == cfg.f3_check_step:
            a.wait_regs(f"v{vPV}")
            spin("L_f3", vPA, S_WS, f"s{sF3}", 1)
            a(f"s_mul_i32 s{sT0}, s{sW}, {5*4096}\n s_add_u32 s{sT0}, s{sT0}, s{sOB}")
            for ks in range(5):
                for mu in range(4):
                    extra.append([f"buffer_load_dwordx4 {ar(aH + 16*ks + 4*mu, 4)}, v{vHA+mu}, {sr(S_WS, 4)}, s{sT0} offen sc1"])
                extra.append([f"s_add_u32 s{sT0}, s{sT0}, 4096"])
        a.wait(lds_all=True)
        if n + NSLOT < 17:
            extra = ring_issue(n + NSLOT) + extra
        if n + 1 < 17:
            rd = c_reads(n + 1)
        else:
            rd = []
        mm = c_mfma(n)
        k = 0
        for i_, m in enumerate(mm):
            a(m)
            if extra:
                take = -(-len(extra) // max(1, 10 - i_)) if i_ < 10 else len(extra)
                for g_ in extra[:take]:
                    for x_ in g_:
                        emit_item(x_)
                extra = extra[take:]
            if i_ >= 8 and k < len(rd):
                if k == 0:
                    a.wait_vm(f"ring{n+1}")
                a(rd[k]); k += 1
        while k < len(rd):
            a(rd[k]); k += 1
    stamp()
    a(f"v_add_u32 v{T0}, s{sRING}, v{vL16}")
    for mu in range(1, 4):
        for t in range(5):
            a(f"ds_write_b128 v{T0}, {vr(vCACC + 4*(5*mu + t), 4)} offset:{(mu-1)*5120 + 1024*t}")
    for mu in range(1, 4):
        a(f"s_xor_b32 s{sT2}, s{sW}, {mu}\n s_mul_i32 s{sT2}, s{sT2}, {L_RING}\n v_add_u32 v{vTMP+mu}, s{sT2}, v{vL16}")
    a(f"""s_lshl_b32 s{sT2}, s{sR}, 2
    s_add_u32 s{sT2}, s{sT2}, s{sW}
    s_mul_i32 s{sT2}, s{sT2}, {16*1280}
    s_mul_i32 s{sT3}, s{sJ}, 160
    s_add_u32 s{sT2}, s{sT2}, s{sT3}""")
    a.wait(lds_all=True)
    a("s_barrier")
    vRD = vCACC + 20
    for t in range(5):
        for mu in range(1, 4):
            a(f"ds_read_b128 {vr(vRD + 4*(3*t + mu - 1), 4)}, v{vTMP+mu} offset:{(mu-1)*5120 + 1024*t}")
    for t in range(5):
        acc = vCACC + 4 * t
        x_ = vRD + 12 * t
        for h in range(2):
            a(f"v_pk_add_f32 {vr(acc + 2*h, 2)}, {vr(acc + 2*h, 2)}, {vr(x_ + 2*h, 2)}")
            a(f"v_pk_add_f32 {vr(x_ + 4 + 2*h, 2)}, {vr(x_ + 4 + 2*h, 2)}, {vr(x_ + 8 + 2*h, 2)}")
        for h in range(2):
            a(f"v_pk_add_f32 {vr(acc + 2*h, 2)}, {vr(acc + 2*h, 2)}, {vr(x_ + 4 + 2*h, 2)}")
        a(f"v_cvt_pk_bf16_f32 v{acc}, v{acc}, v{acc+1}\n v_cvt_pk_bf16_f32 v{acc+1}, v{acc+2}, v{acc+3}")
        a(f"buffer_store_dwordx2 {vr(acc, 2)}, v{vOUT}, {sr(S_OUT, 4)}, s{sT2} offen offset:{32*t}")
    if cfg.diag == "dbg":
        a.wait_all()
        stamp()
        a(f"s_memrealtime {sr(sMASK2, 2)}")
        a.wait_regs(sr(sST, 18))
        a(f"s_cmp_eq_u32 s2, {cfg.dbg_wg}\n s_cbranch_scc0 L_end")
        slots = [1, 2, 3, 5, 6, 7, 9, 10, 11, 13]
        for i in range(1, nstamp[0]):
            a(f"s_sub_u32 s{sT3}, s{sST + 2*i}, s{sST}\n v_mov_b32 v{T0}, s{sT3}")
            a(f"buffer_store_dword v{T0}, v{vP0}, {sr(S_DBG, 4)}, 0 offen offset:{4*slots[i-1]}")
        a(f"s_sub_u32 s{sT3}, s{sMASK2}, s{sRT}\n v_mov_b32 v{T0}, s{sT3}")
        a(f"buffer_store_dword v{T0}, v{vP0}, {sr(S_DBG, 4)}, 0 offen offset:60")
    elif cfg.diag:
        a.wait_all()
        stamp()
        a.wait_regs(sr(sST, 18))
        a(f"s_lshl_b32 s{sT2}, s2, 2\n s_add_u32 s{sT2}, s{sT2}, s{sW}\n s_lshl_b32 s{sT2}, s{sT2}, 6\n s_add_u32 s{sT2}, s{sT2}, {WS_DIAG}")
        for i in range(nstamp[0]):
            a(f"s_sub_u32 s{sT3}, s{sST + 2*i}, s{sST}\n v_mov_b32 v{T0}, s{sT3}")
            a(f"buffer_store_dword v{T0}, v{vPOLL}, {sr(S_WS, 4)}, s{sT2} offen offset:{4*i}")
        a(f"v_mov_b32 v{T0}, s{sST}")
        a(f"buffer_store_dword v{T0}, v{vPOLL}, {sr(S_WS, 4)}, s{sT2} offen offset:60")
    a("s_endpgm")

    a.raw("L_fallback:")
    a.assume_drained()
    a.hist = []
    fallback(a, cfg)
    a.raw("L_end:")
    a.raw("    s_endpgm")
    return a


def fallback(a, cfg):
    T0, T1, T2 = vT, vT + 1, vT + 2
    vM = vTMP
    kb, s = vKV, vS
    a("s_waitcnt vmcnt(0) lgkmcnt(0)")
    a(f"s_mov_b32 s{sFB}, 1")

    def loads(with_v):
        a.raw(f"    buffer_load_dwordx4 {vr(kb, 4)}, v{vL16}, {sr(S_WS, 4)}, s{sKV} offen sc1")
        a.raw(f"    buffer_load_dwordx2 {vr(kb+12, 2)}, v{vK2A}, {sr(S_WS, 4)}, s{sKV} offen offset:2560 sc1")
        if with_v:
            a.raw(f"    buffer_load_dwordx4 {vr(kb+4, 4)}, v{vVA}, {sr(S_WS, 4)}, s{sKV} offen offset:1024 sc1")
            a.raw(f"    buffer_load_dwordx4 {vr(kb+8, 4)}, v{vVA}, {sr(S_WS, 4)}, s{sKV} offen offset:1792 sc1")
        a.raw("    s_waitcnt vmcnt(0)")

    def qk(tau):
        a(f"v_mfma_f32_32x32x16_bf16 {vr(s, 16)}, {vr(kb, 4)}, {vr(vQ + 6*tau, 4)}, 0")
        a(f"v_mfma_f32_32x32x8_bf16 {vr(s, 16)}, {vr(kb+12, 2)}, {vr(vQ + 6*tau + 4, 2)}, {vr(s, 16)}")

    for tau in range(4):
        a(f"v_mov_b32 v{vM+tau}, 0xff800000")
    a(f"s_mov_b32 s{sKV}, s{sKVLO}")
    a.raw("L_fb_max:")
    loads(False)
    for tau in range(4):
        qk(tau)
        for i in range(0, 16, 2):
            a(f"v_max3_f32 v{vM+tau}, v{vM+tau}, v{s+i}, v{s+i+1}")
        a("s_nop 7")
    a(f"s_add_u32 s{sKV}, s{sKV}, {KVREC}\n s_cmp_lt_u32 s{sKV}, s{sKVHI}\n s_cbranch_scc1 L_fb_max")
    for tau in range(4):
        a(f"v_mov_b32 v{vM+4+tau}, v{vM+tau}")
    for tau in range(4):
        a(f"v_permlane32_swap_b32 v{vM+tau}, v{vM+4+tau}")
    for tau in range(4):
        a(f"v_max_f32 v{vM+tau}, v{vM+tau}, v{vM+4+tau}")
    a("s_barrier")
    a(f"s_lshl_b32 s{sT2}, s{sW}, 10\n s_add_u32 s{sT2}, s{sT2}, {L_LSC}\n v_add_u32 v{T1}, s{sT2}, v{vL16}")
    a(f"s_xor_b32 s{sT2}, s{sW}, 2\n s_lshl_b32 s{sT2}, s{sT2}, 10\n s_add_u32 s{sT2}, s{sT2}, {L_LSC}\n v_add_u32 v{T2}, s{sT2}, v{vL16}")
    a(f"ds_write_b128 v{T1}, {vr(vM, 4)}")
    a.wait(lds_all=True)
    a("s_barrier")
    a(f"ds_read_b128 {vr(vM+4, 4)}, v{T2}")
    for tau in range(4):
        a(f"v_max_f32 v{vM+tau}, v{vM+tau}, v{vM + 4 + (tau ^ 2)}")
    a("s_barrier")
    for i in range(64):
        a(f"v_accvgpr_write_b32 a{aO+i}, 0")
    a(f"s_mov_b32 s{sKV}, s{sKVLO}")
    a.raw("L_fb_pv:")
    loads(True)
    for tau in range(4):
        qk(tau)
        for i in range(16):
            a(f"v_sub_f32 v{s+i}, v{s+i}, v{vM+tau}")
        for i in range(16):
            a(f"v_exp_f32 v{s+i}, v{s+i}")
        o = ar(aO + 16 * tau, 16)
        a(f"v_smfmac_f32_32x32x32_bf16 {o}, {vr(kb+4, 4)}, {vr(s, 8)}, v{vIDX}")
        a(f"v_smfmac_f32_32x32x32_bf16 {o}, {vr(kb+8, 4)}, {vr(s+8, 8)}, v{vIDX}")
    a("s_nop 15")
    a(f"s_add_u32 s{sKV}, s{sKV}, {KVREC}\n s_cmp_lt_u32 s{sKV}, s{sKVHI}\n s_cbranch_scc1 L_fb_pv")
    a("s_nop 15")
    a("s_branch L_combine")


HEADER = f"""; Fused gated mix of MQA attention and a ReLU FFN (generated by a hand-written generator, gen/gen.py).
; One workgroup per CU; workgroup (r, j) owns 64 rows, 4 heads / 192 hidden columns / 80 output columns.
; @launch grid=(256,1,1) block=(256,1,1) lds=163840
.amdgcn_target "amdgcn-amd-amdhsa--gfx950"
.text
.globl {NAME}_kernel
.p2align 8
.type {NAME}_kernel,@function
"""
FOOTER = f"""
.section .rodata,"a"
.p2align 6
.amdhsa_kernel {NAME}_kernel
  .amdhsa_next_free_vgpr 512
  .amdhsa_next_free_sgpr 102
  .amdhsa_accum_offset 256
  .amdhsa_group_segment_fixed_size 0
  .amdhsa_kernarg_size 96
  .amdhsa_user_sgpr_count 2
  .amdhsa_user_sgpr_kernarg_segment_ptr 1
  .amdhsa_system_sgpr_workgroup_id_x 1
  .amdhsa_float_denorm_mode_32 3
.end_amdhsa_kernel
"""


def build(**kw):
    cfg = Cfg()
    for k, v in kw.items():
        assert hasattr(cfg, k), k
        setattr(cfg, k, v)
    a = gen(cfg)
    return HEADER + a.text() + FOOTER, a


if __name__ == "__main__":
    kw = {}
    out = f"cdna_kernels/{NAME}.s"
    for arg in sys.argv[1:]:
        k, v = arg.split("=")
        if k == "out":
            out = v
        else:
            kw[k] = eval(v)
    txt, a = build(**kw)
    open(out, "w").write(txt)
    print("written", out, "lines", txt.count("\n"), "nop states inserted", a.nops_inserted)
    if os.environ.get("NOPLOG"):
        print("\n".join(a.log))
```
